```python
import torch

def _softmax(x, axis=-1):
    return torch.softmax(x, dim=axis)
def _gelu(x):
    return torch.nn.functional.gelu(x, approximate="tanh")
def _silu(x):
    return torch.nn.functional.silu(x)
def _sigmoid(x):
    return torch.sigmoid(x)
def _layernorm(x, axis=-1, eps=1e-5):
    m = x.mean(dim=axis, keepdim=True)
    v = x.var(dim=axis, keepdim=True, unbiased=False)
    return (x - m) / torch.sqrt(v + eps)
def _scatter_add(tgt, idx, src, axis=0):
    return tgt.clone().index_add_(axis, idx, src)
def _segment_sum(src, seg, n):
    out = torch.zeros((n,) + src.shape[1:], dtype=src.dtype)
    return out.index_add_(0, seg, src)
def _pad(x, pw):
    flat = tuple(v for pair in reversed(pw) for v in pair)
    return torch.nn.functional.pad(x, flat)

kernel_name = 'standalone__gqa_block_cached__near_ridge'

def setup_inputs():

    _w = (lambda a: (lambda t: t.to(torch.bfloat16) if t.is_floating_point() else t)(torch.as_tensor(a)))
    B, Sq, D = 8, 96, 640
    Hq, Hkv, Sk, Dh = 32, 32, 512, 128
    assert Hq % Hkv == 0, (Hq, Hkv)
    return {
        "x": _w((lambda *s: torch.randn(*s, dtype=torch.bfloat16) * 0.8)(B, Sq, D)),
        "k_cache": _w((lambda *s: torch.randn(*s, dtype=torch.bfloat16) * 0.8)(B, Hkv, Sk, Dh)),
        "v_cache": _w((lambda *s: torch.randn(*s, dtype=torch.bfloat16) * 0.05)(B, Hkv, Sk, Dh)),
        "wq": _w((lambda *s: torch.randn(*s, dtype=torch.bfloat16) * 0.8)(D, Hq * Dh) * (D ** -0.5)),
        "wo": _w((lambda *s: torch.randn(*s, dtype=torch.bfloat16) * 0.05)(Hq * Dh, D) * ((Hq * Dh) ** -0.5)),
    }

def reference(x, k_cache, v_cache, wq, wo):
    B, Sq, D = x.shape
    Hq, Dh = 32, 128
    Hkv = k_cache.shape[1]
    rep = Hq // Hkv
    q = (lambda x, *d: x.permute(*d))((x @ wq).reshape(B, Sq, Hq, Dh), 0, 2, 1, 3)
    k = (lambda x, n, axis: torch.repeat_interleave(x, n, dim=axis))(k_cache, rep, axis=1)
    v = (lambda x, n, axis: torch.repeat_interleave(x, n, dim=axis))(v_cache, rep, axis=1)
    scores = torch.einsum("bhqd,bhkd->bhqk", q, k) * (Dh ** -0.5)
    p = _softmax(scores, axis=-1)
    o = torch.einsum("bhqk,bhkd->bhqd", p, v)
    return (lambda x, *d: x.permute(*d))(o, 0, 2, 1, 3).reshape(B, Sq, Hq * Dh) @ wo
```

```python
import re

class Prog:
    def __init__(self):
        self.lines = []
        self.ds_issued = 0
        self.ds_done = 0
        self.vm_issued = 0
        self.vm_done = 0
    def raw(self, t):
        self.lines.append(t)
    def ins(self, t):
        self.lines.append("    " + t)
    def label(self, l):
        self.lines.append(l + ":")
    def ds(self, t):
        self.ins(t)
        self.ds_issued += 1
        return self.ds_issued
    def wait_ds(self, tag):
        if tag is None or tag <= self.ds_done:
            return
        n = self.ds_issued - tag
        if n > 15:
            n = 15
        self.ins("s_waitcnt lgkmcnt(%d)" % n)
        self.ds_done = max(self.ds_done, self.ds_issued - n)
    def wait_ds_all(self):
        self.wait_ds(self.ds_issued)
    def vm(self, t):
        self.ins(t)
        self.vm_issued += 1
        return self.vm_issued
    def wait_vm(self, tag):
        if tag is None or tag <= self.vm_done:
            return
        n = self.vm_issued - tag
        if n > 63:
            n = 63
        self.ins("s_waitcnt vmcnt(%d)" % n)
        self.vm_done = max(self.vm_done, self.vm_issued - n)
    def wait_vm_all(self):
        self.wait_vm(self.vm_issued)
    def text(self):
        return "\n".join(self.lines) + "\n"

_reg_re = re.compile(r'(?<![\w.])(-?)(abs\()?([vas])(?:(\d+)|\[(\d+):(\d+)\])')
def regs_of(op):
    out = set()
    for m in _reg_re.finditer(op):
        k = m.group(3)
        if m.group(4) is not None:
            out.add((k, int(m.group(4))))
        else:
            for i in range(int(m.group(5)), int(m.group(6)) + 1):
                out.add((k, i))
    if re.search(r'\bvcc\b', op): out.add(('s', 'vcc'))
    if re.search(r'\bm0\b', op): out.add(('s', 'm0'))
    if re.search(r'\bexec\b', op): out.add(('s', 'exec'))
    return out

TRANS = ('v_exp_f32', 'v_log_f32', 'v_rcp_f32', 'v_rsq_f32', 'v_sqrt_f32', 'v_sin_f32', 'v_cos_f32')

def split_ops(s):
    out = []; cur = ''; d = 0
    for ch in s:
        if ch == '[': d += 1
        if ch == ']': d -= 1
        if ch == ',' and d == 0:
            out.append(cur.strip()); cur = ''
        else:
            cur += ch
    if cur.strip(): out.append(cur.strip())
    return out

class I:
    pass

def parse(line):
    t = line.split(';')[0].strip()
    if not t or t.endswith(':') or t.startswith('.'):
        return None
    parts = t.split(None, 1)
    op = parts[0]
    ops = split_ops(parts[1]) if len(parts) > 1 else []
    i = I(); i.op = op; i.text = t
    i.wr = set(); i.rd = set(); i.kind = 'other'; i.srcc = set(); i.ab = set(); i.ws = 1
    if op == 's_nop':
        i.ws = int(ops[0], 0) + 1; i.kind = 'nop'; return i
    if op.startswith('v_mfma'):
        i.kind = 'mfma'
        i.wr = regs_of(ops[0]); i.ab = regs_of(ops[1]) | regs_of(ops[2]); i.srcc = regs_of(ops[3])
        i.rd = i.ab | i.srcc
        i.passes = 8 if '32x32' in op else 4
        return i
    if op.startswith('v_permlane'):
        i.kind = 'perm'; i.wr = regs_of(ops[0]) | regs_of(ops[1]); i.rd = set(i.wr); return i
    if op.startswith('v_cmp'):
        i.kind = 'valu'; i.wr = regs_of(ops[0]);
        for o in ops[1:]: i.rd |= regs_of(o)
        if op.startswith('v_cmpx'): i.wr.add(('s','exec'))
        return i
    if op.startswith('v_'):
        i.kind = 'trans' if op.replace('_e32','').replace('_e64','') in TRANS else 'valu'
        i.wr = regs_of(ops[0])
        for o in ops[1:]: i.rd |= regs_of(o)
        if op.startswith('v_fmac') or op.startswith('v_pk_fmac'): i.rd |= i.wr
        if op.startswith('v_add_co') or op.startswith('v_addc_co') or op.startswith('v_sub_co'):
            i.wr |= regs_of(ops[1])
        i.rfl = op.startswith('v_readfirstlane') or op.startswith('v_readlane')
        return i
    if op.startswith('ds_read') or op.startswith('ds_bpermute') or op.startswith('ds_swizzle'):
        i.kind = 'ds'; i.wr = regs_of(ops[0])
        for o in ops[1:]: i.rd |= regs_of(o)
        return i
    if op.startswith('ds_'):
        i.kind = 'ds'
        for o in ops: i.rd |= regs_of(o)
        return i
    if op.startswith('buffer_') or op.startswith('global_'):
        i.kind = 'vmem'
        lds = re.search(r'\blds\b', t) is not None
        i.lds = lds
        if 'load' in op and not lds:
            i.wr = regs_of(ops[0])
            for o in ops[1:]: i.rd |= regs_of(o)
        elif 'atomic' in op and 'sc0' in t:
            i.wr = regs_of(ops[0])
            for o in ops: i.rd |= regs_of(o)
        else:
            for o in ops: i.rd |= regs_of(o)
        if lds: i.rd.add(('s','m0'))
        i.widestore = ('store' in op) and ('x4' in op or 'x3' in op)
        if i.widestore:
            i.data = regs_of(ops[0]) if op.startswith('buffer_') else regs_of(ops[1])
        return i
    if op.startswith('s_'):
        i.kind = 'salu'
        if op in ('s_waitcnt', 's_barrier', 's_endpgm', 's_branch', 's_setprio', 's_sleep') or op.startswith('s_cbranch'):
            return i
        if op.startswith('s_cmp') or op.startswith('s_bitcmp'):
            for o in ops: i.rd |= regs_of(o)
            return i
        i.wr = regs_of(ops[0])
        for o in ops[1:]: i.rd |= regs_of(o)
        if 'saveexec' in op: i.wr.add(('s','exec'))
        return i
    return i

def need(prev, cur):
    n = 0
    pv = prev.kind in ('valu', 'trans', 'perm')
    if pv:
        vw = {r for r in prev.wr if r[0] in 'va'}
        sw = {r for r in prev.wr if r[0] == 's'}
        if cur.kind == 'mfma' and vw & cur.rd: n = max(n, 2)
        if cur.kind == 'perm' and vw & cur.rd: n = max(n, 2)
        if prev.kind == 'trans' and cur.kind in ('valu', 'perm', 'mfma') and vw & cur.rd: n = max(n, 1)
        if cur.kind in ('valu','trans') and getattr(cur, 'rfl', False) and vw & cur.rd: n = max(n, 1)
        if sw and cur.kind == 'vmem' and sw & cur.rd: n = max(n, 5)
        if sw and cur.kind in ('valu', 'trans') and sw & cur.rd: n = max(n, 2)
        if sw and cur.kind in ('valu', 'trans') and getattr(cur,'rfl',False) and sw & cur.rd: n = max(n, 4)
        if ('s','exec') in sw and cur.kind == 'mfma': n = max(n, 4)
        if ('s','exec') in sw and cur.kind == 'perm': n = max(n, 4)
    if prev.kind == 'mfma':
        p = prev.passes
        big = {8: 12, 4: 8}[p]
        if cur.kind == 'mfma':
            if prev.wr & cur.ab: n = max(n, big)
            if prev.wr & cur.srcc:
                if prev.wr == cur.srcc and cur.passes == p: pass
                else: n = max(n, {8: 10, 4: 6}[p])
            elif prev.wr & cur.wr:
                n = max(n, big)
        elif cur.kind in ('valu', 'trans', 'perm'):
            if prev.wr & (cur.rd | cur.wr): n = max(n, big)
            if prev.srcc & cur.wr: n = max(n, {8: 7, 4: 3}[p])
        elif cur.kind in ('ds', 'vmem'):
            if prev.wr & (cur.rd | cur.wr): n = max(n, big)
    if prev.kind == 'salu' and ('s', 'm0') in prev.wr:
        if cur.kind == 'vmem' and getattr(cur, 'lds', False): n = max(n, 1)
    if prev.kind == 'vmem' and getattr(prev, 'widestore', False):
        if cur.kind in ('valu', 'trans', 'perm', 'mfma') and prev.data & cur.wr: n = max(n, 2)
        elif prev.data & cur.wr: n = max(n, 1)
    return n

def pad_hazards(text, verbose=False):
    out = []
    hist = []
    npad = 0
    for line in text.split('\n'):
        i = parse(line)
        if i is None:
            out.append(line); continue
        dist = 0; req = 0
        for p in reversed(hist[-24:]):
            nn = need(p, i)
            if nn > dist:
                req = max(req, nn - dist)
            dist += p.ws
            if dist > 24: break
        if req > 0:
            npad += 1
            if verbose: print("pad %d before: %s" % (req, i.text))
            r = req
            while r > 0:
                k = min(r, 16)
                out.append("    s_nop %d" % (k - 1))
                nopi = parse("s_nop %d" % (k - 1)); hist.append(nopi)
                r -= k
        out.append(line)
        hist.append(i)
    return '\n'.join(out), npad

def interleave(main, fill):
    out = []
    n = len(main)
    if n == 0: return list(fill)
    k = 0
    for idx, m in enumerate(main):
        out.append(m)
        tgt = (len(fill) * (idx + 1)) // n
        while k < tgt:
            out.append(fill[k]); k += 1
    return out
```

```python
import sys
from asmlib import *

NVREG = 6
WBASE = 131072
SC = 0.08838834764831845 * 1.4426950408889634
import struct
def f32bits(x): return struct.unpack('<I', struct.pack('<f', x))[0]

def vr(b, n=1): return "v%d" % b if n == 1 else "v[%d:%d]" % (b, b + n - 1)
def ar(b, n=1): return "a%d" % b if n == 1 else "a[%d:%d]" % (b, b + n - 1)

class Item:
    def __init__(self, t, k='x', tag=None, need=(), needvm=()):
        self.t = t; self.k = k; self.tag = tag; self.need = need; self.needvm = needvm

def emit(P, items, tags):
    for it in items:
        if callable(it):
            it(); continue
        for n in it.need: P.wait_ds(tags[n])
        for n in it.needvm: P.wait_vm(tags[n])
        if it.k == 'ds':
            tg = P.ds(it.t)
        elif it.k == 'vm':
            tg = P.vm(it.t)
        else:
            P.ins(it.t); tg = None
        if it.tag is not None: tags[it.tag] = tg

def srd(P, d, blo, bhi, size):
    P.ins("s_mov_b32 s%d, s%d" % (d, blo))
    P.ins("s_and_b32 s%d, s%d, 0xffff" % (d + 1, bhi))
    if isinstance(size, str): P.ins("s_mov_b32 s%d, %s" % (d + 2, size))
    else: P.ins("s_mov_b32 s%d, 0x%x" % (d + 2, size))
    P.ins("s_mov_b32 s%d, 0x00020000" % (d + 3))

def gen_attn():
    P = Prog()
    P.raw(".globl attn_kernel\n.p2align 8\n.type attn_kernel,@function\nattn_kernel:")
    P.ins("s_cmp_ge_u32 s2, 256")
    P.ins("s_cbranch_scc1 A_end")
    P.ins("s_load_dwordx4 s[4:7], s[0:1], 0")
    P.ins("s_load_dwordx4 s[8:11], s[0:1], 16")
    P.ins("s_load_dwordx2 s[12:13], s[0:1], 56")
    P.ins("s_and_b32 s14, s2, 7")
    P.ins("s_lshl_b32 s14, s14, 2")
    P.ins("s_bfe_u32 s15, s2, 0x20003")
    P.ins("s_add_u32 s14, s14, s15")
    P.ins("s_lshr_b32 s15, s2, 5")
    P.ins("v_lshrrev_b32 v1, 6, v0")
    P.ins("v_and_b32 v0, 63, v0")
    P.ins("s_nop 0")
    P.ins("v_readfirstlane_b32 s16, v1")
    P.ins("s_lshl_b32 s17, s15, 5")
    P.ins("s_add_u32 s17, s17, s14")
    P.ins("s_lshl_b32 s17, s17, 17")
    P.ins("s_mul_i32 s18, s15, 122880")
    P.ins("s_lshl_b32 s19, s14, 8")
    P.ins("s_mul_i32 s41, s15, 786432")
    P.ins("s_add_u32 s41, s41, s19")
    P.ins("s_waitcnt lgkmcnt(0)")
    P.ins("s_add_u32 s4, s4, s18"); P.ins("s_addc_u32 s5, s5, 0")
    srd(P, 20, 4, 5, 122880)
    P.ins("s_add_u32 s6, s6, s17"); P.ins("s_addc_u32 s7, s7, 0")
    srd(P, 24, 6, 7, 131072)
    P.ins("s_add_u32 s8, s8, s17"); P.ins("s_addc_u32 s9, s9, 0")
    srd(P, 28, 8, 9, 131072)
    P.ins("s_add_u32 s10, s10, s19"); P.ins("s_addc_u32 s11, s11, 0")
    P.ins("s_sub_u32 s42, 5242880, s19")
    srd(P, 32, 10, 11, "s42")
    P.ins("s_add_u32 s12, s12, s41"); P.ins("s_addc_u32 s13, s13, 0")
    P.ins("s_sub_u32 s42, 786432, s19")
    srd(P, 36, 12, 13, "s42")
    P.ins("s_cmp_eq_u32 s16, 3")
    P.ins("s_cbranch_scc1 A_loader")
    pre = P.text()
    comp = gen_compute()
    load = gen_loader()
    return pre + comp + load + "A_end:\n    s_endpgm\n"

AK = 1
AV = 9
VO = 13
VM = 14
VL0 = 15; VL1 = 16
VMC = 17
VT = 18
QF = 24
SB = 56
TMP = 248
XF = 24
QACC = 184
AS = 0
AO = 64
AF = 128

def Sreg(kb, r=0, n=16):
    if kb < 12: return vr(SB + 16 * kb + r, n)
    return ar(AS + 16 * (kb - 12) + r, n)

def gen_compute():
    P = Prog()
    tags = {}
    P.ins("v_and_b32 v18, 31, v0")
    P.ins("v_lshrrev_b32 v19, 5, v0")
    P.ins("v_lshrrev_b32 v20, 4, v0")
    P.ins("v_and_b32 v21, 15, v0")
    P.ins("s_lshl_b32 s40, s16, 5")
    P.ins("v_add_u32 v22, s40, v18")
    P.ins("v_mul_u32_u24 v23, 1280, v22")
    P.ins("v_lshl_add_u32 v23, v19, 4, v23")
    P.ins("v_lshlrev_b32 v%d, 13, v22" % VO)
    P.ins("v_lshl_add_u32 v%d, v19, 4, v%d" % (VO, VO))
    for ks in range(40):
        P.vm("buffer_load_dwordx4 %s, v23, s[20:23], 0 offen offset:%d" % (vr(XF + 4 * ks, 4), ks * 32))
    P.ins("v_lshlrev_b32 v249, 2, v20")
    P.ins("v_xor_b32 v249, v21, v249")
    P.ins("v_lshlrev_b32 v249, 4, v249")
    P.ins("v_lshl_add_u32 v248, v20, 13, v249")
    def wtile(T):
        P.ins("s_mov_b32 m0, %d" % (WBASE + (T % 4) * 8192))
        P.ins("s_mov_b32 s40, %d" % (T * 32 * 8192))
        for i in range(8):
            P.vm("buffer_load_dwordx4 v248, s[32:35], s40 offen lds")
            if i < 7:
                P.ins("s_add_u32 m0, m0, 1024")
                P.ins("s_add_u32 s40, s40, 32768")
    for T in range(4):
        P.ins("s_cmp_eq_u32 s16, %d" % (T % 3))
        P.ins("s_cbranch_scc0 A_pw%d" % T)
        wtile(T)
        P.label("A_pw%d" % T)
    P.ins("v_lshrrev_b32 v249, 1, v0")
    P.ins("v_lshlrev_b32 v249, 13, v249")
    P.ins("v_and_b32 v250, 1, v0")
    P.ins("v_lshl_add_u32 v249, v250, 7, v249")
    P.ins("s_lshl_b32 s40, s16, 18")
    P.ins("s_add_u32 s40, s40, %d" % (4 * 262144))
    for n in range(6):
        P.vm("buffer_load_dword v247, v249, s[32:35], s40 offen")
        if n < 5: P.ins("s_add_u32 s40, s40, %d" % (3 * 262144))
    P.ins("v_and_b32 v249, 1, v0")
    P.ins("v_bfe_u32 v250, v0, 1, 1")
    P.ins("v_lshrrev_b32 v251, 2, v21")
    P.ins("v_and_b32 v252, 1, v20")
    P.ins("v_lshl_or_b32 v252, v252, 1, v249")
    P.ins("v_lshlrev_b32 v252, 4, v252")
    P.ins("v_lshl_add_u32 v252, v250, 3, v252")
    P.ins("v_lshrrev_b32 v253, 1, v20")
    P.ins("v_lshl_add_u32 v254, v253, 3, v251")
    P.ins("v_lshl_add_u32 v254, v254, 8, v252")
    P.ins("v_add_u32 v254, %d, v254" % WBASE)
    P.ins("v_lshl_add_u32 v255, v253, 2, v251")
    P.ins("v_lshl_add_u32 v255, v255, 8, v252")
    for db in range(4):
        P.ins("v_xor_b32 v249, %d, v251" % db)
        P.ins("v_lshl_add_u32 v%d, v249, 6, v254" % (AV + db))
    P.ins("v_mov_b32 v22, v255")
    P.ins("v_mov_b32 v23, v251")
    for s in range(8):
        P.ins("v_add_u32 v249, %d, v19" % (2 * s))
        P.ins("v_xor_b32 v249, v249, v21")
        P.ins("v_lshlrev_b32 v249, 4, v249")
        P.ins("v_lshl_add_u32 v%d, v18, 8, v249" % (AK + s))
    P.ins("s_mov_b32 s44, 0x%x" % f32bits(SC))
    P.wait_vm_all()
    def wreads(t):
        its = []
        buf = t % 2
        for ks2 in range(2):
            for db in range(4):
                for r2 in range(2):
                    its.append(Item("ds_read_b64_tr_b16 %s, v%d offset:%d" % (
                        ar(AF + 32 * buf + (ks2 * 4 + db) * 4 + 2 * r2, 2), AV + db,
                        (t % 4) * 8192 + ks2 * 4096 + r2 * 1024), 'ds', tag=('w', t, ks2, db)))
        return its
    def wmfma(t):
        its = []
        buf = t % 2
        for ks2 in range(2):
            for db in range(4):
                c = "0" if (t == 0 and ks2 == 0) else vr(QACC + 16 * db, 16)
                its.append(Item("v_mfma_f32_32x32x16_bf16 %s, %s, %s, %s" % (
                    vr(QACC + 16 * db, 16), ar(AF + 32 * buf + (ks2 * 4 + db) * 4, 4),
                    vr(XF + 4 * (2 * t + ks2), 4), c), need=[('w', t, ks2, db)]))
        return its
    for t in range(20):
        if t >= 4:
            P.ins("s_cmp_eq_u32 s16, %d" % (t % 3))
            P.ins("s_cbranch_scc0 A_qw%d" % t)
            P.ins("s_waitcnt vmcnt(0)")
            P.label("A_qw%d" % t)
        P.wait_ds_all()
        P.ins("s_barrier")
        if 1 <= t <= 16:
            P.ins("s_cmp_eq_u32 s16, %d" % (t % 3))
            P.ins("s_cbranch_scc0 A_qi%d" % t)
            wtile(t + 3)
            P.label("A_qi%d" % t)
        rd = wreads(t)
        if t == 0:
            emit(P, rd, tags)
        else:
            mf = wmfma(t - 1)
            seq = []
            for n, m in enumerate(mf):
                seq.append(m)
                if n < 4: seq += rd[4 * n:4 * n + 4]
            emit(P, seq, tags)
    emit(P, wmfma(19), tags)
    P.vm_done = P.vm_issued
    for db in range(4):
        P.ins("v_xor_b32 v249, %d, v23" % db)
        P.ins("v_lshl_add_u32 v%d, v249, 6, v22" % (AV + db))
    P.ins("v_mov_b32 v%d, 0xff800000" % VM)
    for s in range(8):
        for p in range(4):
            a = QACC + 16 * (s >> 1) + 8 * (s & 1) + 2 * p
            P.ins("v_cvt_pk_bf16_f32 v%d, v%d, v%d" % (QF + 4 * s + p, a, a + 1))
    def kreads(kb):
        its = []
        for s in range(8):
            its.append(Item("ds_read_b128 %s, v%d offset:%d" % (ar(AF + 32 * (kb % 2) + 4 * s, 4), AK + s, (kb % 8) * 8192),
                            'ds', tag=('k', kb, s)))
        return its
    def smfma(kb):
        its = []
        for s in range(8):
            c = "0" if s == 0 else Sreg(kb)
            its.append(Item("v_mfma_f32_32x32x16_bf16 %s, %s, %s, %s" % (
                Sreg(kb), ar(AF + 32 * (kb % 2) + 4 * s, 4), vr(QF + 4 * s, 4), c), need=[('k', kb, s)]))
        return its
    def maxops(kb):
        its = []
        for p in range(8):
            if kb < 12:
                a = SB + 16 * kb + 2 * p
                its.append(Item("v_max3_f32 v%d, v%d, v%d, v%d" % (VM, a, a + 1, VM)))
            else:
                a = AS + 16 * (kb - 12) + 2 * p
                t0 = TMP + 2 * (p % 4)
                its.append(Item("v_accvgpr_read_b32 v%d, a%d" % (t0, a)))
                its.append(Item("v_accvgpr_read_b32 v%d, a%d" % (t0 + 1, a + 1)))
                its.append(Item("v_max3_f32 v%d, v%d, v%d, v%d" % (VM, t0, t0 + 1, VM)))
        return its
    def barrier():
        P.wait_ds_all()
        P.ins("s_barrier")
    barrier()
    emit(P, kreads(0), tags)
    for kb in range(16):
        mf = smfma(kb)
        seq = []
        nxt = kb + 1
        pre_items = []
        if nxt < 16:
            if nxt % 2 == 0:
                pre_items.append(barrier)
            if nxt == 8:
                for s in range(8):
                    pre_items.append(Item("v_add_u32 v%d, 0x10000, v%d" % (AK + s, AK + s)))
            rd = kreads(nxt)
        else:
            rd = []
        mx = maxops(kb - 1) if kb >= 1 else []
        seq += pre_items
        for n, m in enumerate(mf):
            seq.append(m)
            if n < 4: seq += rd[2 * n:2 * n + 2]
            if n >= 3:
                k0 = (len(mx) * (n - 3)) // 5; k1 = (len(mx) * (n - 2)) // 5
                seq += mx[k0:k1]
        emit(P, seq, tags)
    emit(P, maxops(15), tags)
    P.ins("v_mov_b32 v%d, v%d" % (VT, VM))
    P.ins("v_mov_b32 v%d, v%d" % (VT + 1, VM))
    P.ins("v_permlane32_swap_b32 v%d, v%d" % (VT, VT + 1))
    P.ins("v_max_f32 v%d, v%d, v%d" % (VM, VT, VT + 1))
    P.ins("v_mul_f32 v%d, s44, v%d" % (VMC, VM))
    P.ins("v_mov_b32 v%d, 0" % VL0)
    P.ins("v_mov_b32 v%d, 0" % VL1)
    def Preg(kk):
        kb = kk >> 1; u = kk & 1
        if kb < 12: return SB + 16 * kb + 4 * u
        i2 = 2 * (kb - 12) + u
        return SB + 16 * i2 + 8
    def eops(kb):
        its = []
        if kb < 12:
            regs = [SB + 16 * kb + r for r in range(16)]
        else:
            regs = [SB + 16 * (2 * (kb - 12) + (r >> 3)) + 8 + (r & 7) for r in range(16)]
        for r in range(18):
            if r < 16:
                if kb >= 12:
                    its.append(Item("v_accvgpr_read_b32 v%d, a%d" % (regs[r], AS + 16 * (kb - 12) + r)))
                its.append(Item("v_fma_f32 v%d, v%d, s44, -v%d" % (regs[r], regs[r], VMC)))
            if 0 <= r - 1 < 16:
                its.append(Item("v_exp_f32 v%d, v%d" % (regs[r - 1], regs[r - 1])))
            if 0 <= r - 2 < 16:
                L = VL0 if (r % 2 == 0) else VL1
                its.append(Item("v_add_f32 v%d, v%d, v%d" % (L, L, regs[r - 2])))
        for p in range(8):
            if kb < 12: d = SB + 16 * kb + p
            else: d = SB + 16 * (2 * (kb - 12) + (p >> 2)) + 8 + (p & 3)
            its.append(Item("v_cvt_pk_bf16_f32 v%d, v%d, v%d" % (d, regs[2 * p], regs[2 * p + 1])))
        return its
    def vbase(j): return j * 16384 if j < 6 else WBASE + (j - 6) * 16384
    def vreads(kk):
        its = []
        for db in range(4):
            for r2 in range(2):
                its.append(Item("ds_read_b64_tr_b16 %s, v%d offset:%d" % (
                    ar(AF + 16 * (kk % 4) + 4 * db + 2 * r2, 2), AV + db, (kk & 3) * 4096 + r2 * 2048),
                    'ds', tag=('v', kk, db)))
        return its
    def pmfma(kk):
        its = []
        for db in range(4):
            c = "0" if kk == 0 else ar(AO + 16 * db, 16)
            its.append(Item("v_mfma_f32_32x32x16_bf16 %s, %s, %s, %s" % (
                ar(AO + 16 * db, 16), ar(AF + 16 * (kk % 4) + 4 * db, 4), vr(Preg(kk), 4), c), need=[('v', kk, db)]))
        return its
    def pbar(j):
        def f():
            P.ins("s_barrier")
            if j > 0:
                d = vbase(j) - vbase(j - 1)
                for db in range(4):
                    P.ins("v_add_u32 v%d, 0x%x, v%d" % (AV + db, d, AV + db))
        return f
    emit(P, eops(0) + eops(1), tags)
    ework = []
    for kb in range(2, 16): ework += [(kb, it) for it in eops(kb)]
    per_kk = [0] * 32
    done_blocks = 2
    plan = {}
    kbn = 2
    for kk in range(32):
        plan[kk] = 0.75
    emit(P, [pbar(0)] + vreads(0) + vreads(1), tags)
    epos = 0
    acc = 0.0
    blk_len = len(eops(2))
    for kk in range(32):
        mf = pmfma(kk)
        need_kb = (kk >> 1)
        fill = []
        acc += plan[kk] * blk_len
        tgt = int(acc)
        must = (kk + 1) >> 1
        while epos < len(ework) and (epos < tgt or ework[epos][0] <= must):
            fill.append(ework[epos][1]); epos += 1
        pre_items = []
        rd = []
        n2 = kk + 2
        if n2 < 32:
            if n2 % 4 == 0: pre_items.append(pbar(n2 // 4))
            rd = vreads(n2)
        seq = list(pre_items)
        fl = rd + fill
        seq += interleave(mf, fl)
        emit(P, seq, tags)
    assert epos == len(ework)
    P.ins("v_add_f32 v%d, v%d, v%d" % (VL0, VL0, VL1))
    P.ins("v_mov_b32 v%d, v%d" % (VT, VL0))
    P.ins("v_mov_b32 v%d, v%d" % (VT + 1, VL0))
    P.ins("v_permlane32_swap_b32 v%d, v%d" % (VT, VT + 1))
    P.ins("v_add_f32 v%d, v%d, v%d" % (VL0, VT, VT + 1))
    P.ins("v_rcp_f32 v%d, v%d" % (VL1, VL0))
    for db in range(4):
        base = SB + 16 * db
        for r in range(16):
            P.ins("v_accvgpr_read_b32 v%d, a%d" % (base + r, AO + 16 * db + r))
        for r in range(16):
            P.ins("v_mul_f32 v%d, v%d, v%d" % (base + r, base + r, VL1))
        ob = SB + 64 + 8 * db
        for p in range(8):
            P.ins("v_cvt_pk_bf16_f32 v%d, v%d, v%d" % (ob + p, base + 2 * p, base + 2 * p + 1))
        for u in range(2):
            P.vm("buffer_store_dwordx4 %s, v%d, s[36:39], 0 offen offset:%d" % (vr(ob + 4 * u, 4), VO, db * 64 + u * 32))
    P.ins("s_endpgm")
    return P.text()

def gen_loader():
    P = Prog()
    P.label("A_loader")
    tags = {}
    P.ins("v_lshrrev_b32 v1, 4, v0")
    P.ins("v_and_b32 v2, 15, v0")
    for i in range(4):
        P.ins("v_add_u32 v3, %d, v1" % (4 * i))
        P.ins("v_xor_b32 v3, v3, v2")
        P.ins("v_lshlrev_b32 v3, 4, v3")
        P.ins("v_lshl_add_u32 v%d, v1, 8, v3" % (4 + i))
    P.ins("v_lshlrev_b32 v8, 4, v0")
    P.ins("v_lshlrev_b32 v3, 2, v1")
    P.ins("v_xor_b32 v3, v3, v2")
    P.ins("v_lshlrev_b32 v3, 4, v3")
    P.ins("v_lshl_add_u32 v9, v1, 8, v3")
    P.ins("v_add_u32 v10, 0x10000, v9")
    def vstage(j, i):
        n = j * 16 + i
        if n < 58: return vr(24 + 4 * n, 4)
        return ar(4 * (n - 58), 4)
    ops = []
    for j in range(8):
        for g in range(4):
            for i in range(4):
                def f(j=j, g=g, i=i):
                    if i == 0:
                        P.ins("s_mov_b32 m0, %d" % (j * 16384 + g * 4096))
                        P.ins("s_mov_b32 s40, %d" % (j * 16384 + g * 4096))
                    tags[('K', j)] = P.vm("buffer_load_dwordx4 v%d, s[24:27], s40 offen offset:%d lds" % (4 + i, i * 1024))
                ops.append(f)
    for j in range(NVREG):
        for g in range(4):
            for i in range(4):
                def f(j=j, g=g, i=i):
                    if i == 0:
                        P.ins("s_mov_b32 s40, %d" % (j * 16384 + g * 4096))
                    tags[('V', j)] = P.vm("buffer_load_dwordx4 %s, v8, s[28:31], s40 offen offset:%d" % (vstage(j, 4 * g + i), i * 1024))
                ops.append(f)
    ops2 = []
    for j in range(NVREG, 8):
        for g in range(4):
            for i in range(4):
                def f(j=j, g=g, i=i):
                    if i == 0:
                        P.ins("s_mov_b32 m0, %d" % (WBASE + (j - 6) * 16384 + g * 4096))
                        P.ins("s_mov_b32 s40, %d" % (j * 16384 + g * 4096))
                    tags[('V', j)] = P.vm("buffer_load_dwordx4 v9, s[28:31], s40 offen offset:%d lds" % (i * 1024))
                ops2.append(f)
    pos = 0
    def issue(n):
        nonlocal pos
        for _ in range(n):
            if pos < len(ops):
                ops[pos](); pos += 1
    issue(60)
    for t in range(20):
        P.ins("s_barrier")
        issue(6)
    ops.extend(ops2)
    for j in range(8):
        P.wait_vm(tags[('K', j)])
        P.ins("s_barrier")
        issue(12)
    issue(1000)
    for j in range(8):
        P.wait_vm(tags[('V', j)])
        if j < NVREG:
            for i in range(16):
                off = j * 16384 + i * 1024
                if off < 65536: P.ds("ds_write_b128 v9, %s offset:%d" % (vstage(j, i), off))
                else: P.ds("ds_write_b128 v10, %s offset:%d" % (vstage(j, i), off - 65536))
            P.wait_ds_all()
        P.ins("s_barrier")
    P.ins("s_endpgm")
    return P.text()

def gen_oproj():
    P = Prog()
    tags = {}
    P.raw(".globl oproj_kernel\n.p2align 8\n.type oproj_kernel,@function\noproj_kernel:")
    P.ins("s_cmp_ge_u32 s2, 240")
    P.ins("s_cbranch_scc1 O_end")
    P.ins("s_load_dwordx4 s[4:7], s[0:1], 32")
    P.ins("s_load_dwordx2 s[8:9], s[0:1], 56")
    P.ins("s_and_b32 s14, s2, 7")
    P.ins("s_lshr_b32 s15, s2, 3")
    P.ins("s_mul_i32 s16, s15, 52")
    P.ins("s_lshr_b32 s16, s16, 8")
    P.ins("s_mul_i32 s17, s16, 5")
    P.ins("s_sub_u32 s17, s15, s17")
    P.ins("s_lshr_b32 s18, s14, 1")
    P.ins("s_mul_i32 s18, s18, 192")
    P.ins("s_lshl_b32 s19, s16, 5")
    P.ins("s_add_u32 s18, s18, s19")
    P.ins("s_and_b32 s19, s14, 1")
    P.ins("s_mul_i32 s19, s19, 320")
    P.ins("s_lshl_b32 s17, s17, 6")
    P.ins("s_add_u32 s19, s19, s17")
    P.ins("v_lshrrev_b32 v1, 6, v0")
    P.ins("v_and_b32 v0, 63, v0")
    P.ins("s_nop 0")
    P.ins("v_readfirstlane_b32 s16, v1")
    P.ins("s_lshl_b32 s40, s18, 13")
    P.ins("s_mul_i32 s41, s18, 1280")
    P.ins("s_lshl_b32 s42, s19, 1")
    P.ins("s_add_u32 s41, s41, s42")
    P.ins("s_mul_i32 s43, s16, %d" % (1024 * 1280))
    P.ins("s_add_u32 s43, s43, s42")
    P.ins("s_waitcnt lgkmcnt(0)")
    P.ins("s_add_u32 s4, s4, s43"); P.ins("s_addc_u32 s5, s5, 0")
    P.ins("s_sub_u32 s44, 5242880, s43")
    srd(P, 20, 4, 5, "s44")
    P.ins("s_add_u32 s6, s6, s41"); P.ins("s_addc_u32 s7, s7, 0")
    P.ins("s_sub_u32 s44, 983040, s41")
    srd(P, 24, 6, 7, "s44")
    P.ins("s_add_u32 s8, s8, s40"); P.ins("s_addc_u32 s9, s9, 0")
    srd(P, 28, 8, 9, 32 * 8192)
    P.ins("v_and_b32 v18, 31, v0")
    P.ins("v_lshrrev_b32 v19, 5, v0")
    P.ins("v_lshrrev_b32 v20, 4, v0")
    P.ins("v_and_b32 v21, 15, v0")
    P.ins("s_lshl_b32 s45, s16, 11")
    P.ins("v_lshlrev_b32 v2, 13, v18")
    P.ins("v_lshl_add_u32 v2, v19, 4, v2")
    P.ins("v_add_u32 v2, s45, v2")
    P.ins("v_lshrrev_b32 v3, 3, v0")
    P.ins("v_bfe_u32 v4, v0, 4, 1")
    P.ins("v_lshlrev_b32 v4, 2, v4")
    P.ins("v_and_b32 v5, 7, v0")
    P.ins("v_xor_b32 v4, v4, v5")
    P.ins("v_lshlrev_b32 v4, 4, v4")
    P.ins("v_mul_u32_u24 v3, 1280, v3")
    P.ins("v_add_u32 v3, v3, v4")
    P.ins("s_lshl_b32 s46, s16, 15")
    NS = 8
    def dma(t):
        P.ins("s_add_u32 m0, s46, %d" % ((t % NS) * 4096))
        P.ins("s_mov_b32 s47, %d" % (t * 32 * 1280))
        for i in range(4):
            tags[('T', t)] = P.vm("buffer_load_dwordx4 v3, s[20:23], s47 offen lds")
            if i < 3:
                P.ins("s_add_u32 m0, m0, 1024")
                P.ins("s_add_u32 s47, s47, %d" % (8 * 1280))
    def ofrag(ks):
        tags[('O', ks)] = P.vm("buffer_load_dwordx4 %s, v2, s[28:31], 0 offen offset:%d" % (ar(4 * ks, 4), ks * 32))
    for ks in range(8): ofrag(ks)
    for t in range(NS - 1): dma(t)
    for ks in range(8, 24): ofrag(ks)
    P.ins("v_and_b32 v6, 1, v0")
    P.ins("v_bfe_u32 v7, v0, 1, 1")
    P.ins("v_lshrrev_b32 v8, 2, v21")
    P.ins("v_and_b32 v9, 1, v20")
    P.ins("v_lshl_or_b32 v9, v9, 1, v6")
    P.ins("v_lshlrev_b32 v9, 4, v9")
    P.ins("v_lshl_add_u32 v9, v7, 3, v9")
    P.ins("v_lshrrev_b32 v10, 1, v20")
    P.ins("v_lshl_add_u32 v10, v10, 3, v8")
    P.ins("v_lshl_add_u32 v9, v10, 7, v9")
    P.ins("v_add_u32 v9, s46, v9")
    P.ins("v_bfe_u32 v10, v0, 3, 1")
    for nb in range(2):
        P.ins("v_xor_b32 v11, %d, v10" % nb)
        P.ins("v_lshl_add_u32 v%d, v11, 6, v9" % (12 + nb))
    ACC = 32
    FR = 64
    def reads(t):
        its = []
        for ks in range(2):
            for nb in range(2):
                for r2 in range(2):
                    its.append(Item("ds_read_b64_tr_b16 %s, v%d offset:%d" % (
                        vr(FR + 16 * (t % 2) + (ks * 2 + nb) * 4 + 2 * r2, 2), 12 + nb,
                        (t % NS) * 4096 + ks * 2048 + r2 * 512), 'ds', tag=('r', t, ks, nb),
                        needvm=[('T', t)]))
        return its
    def mf(t):
        its = []
        for ks in range(2):
            for nb in range(2):
                c = "0" if (t == 0 and ks == 0) else vr(ACC + 16 * nb, 16)
                its.append(Item("v_mfma_f32_32x32x16_bf16 %s, %s, %s, %s" % (
                    vr(ACC + 16 * nb, 16), vr(FR + 16 * (t % 2) + (ks * 2 + nb) * 4, 4), ar(4 * (2 * t + ks), 4), c),
                    need=[('r', t, ks, nb)], needvm=[('O', 2 * t + ks)]))
        return its
    emit(P, reads(0), tags)
    onext = 24
    for t in range(32):
        m = mf(t)
        seq = []
        if t + 1 < 32:
            rd = reads(t + 1)
        else: rd = []
        seq.append(m[0])
        seq += rd[0:4]
        seq.append(m[1])
        seq += rd[4:8]
        seq.append(m[2]);
        def iss(t=t):
            nonlocal onext
            if t + NS - 1 < 32 and t >= 0:
                dma(t + NS - 1)
            for _ in range(2):
                if onext < 64:
                    ofrag(onext); onext += 1
        seq.append(iss)
        seq.append(m[3])
        emit(P, seq, tags)
    P.ins("v_lshlrev_b32 v4, 4, v0")
    P.ins("v_add_u32 v5, s46, v4")
    for j in range(8):
        P.ds("ds_write_b128 v5, %s offset:%d" % (vr(ACC + 4 * j, 4), j * 1024))
    P.wait_ds_all()
    P.ins("s_barrier")
    P.ins("s_lshl_b32 s47, s16, 11")
    P.ins("v_add_u32 v5, s47, v4")
    P.ins("v_add_u32 v6, 0x10000, v5")
    for w in range(4):
        for q in range(2):
            a = "v5" if w < 2 else "v6"
            P.ds("ds_read_b128 %s, %s offset:%d" % (vr(64 + 8 * w + 4 * q, 4), a, (w % 2) * 32768 + q * 1024))
    P.wait_ds_all()
    for r in range(8):
        P.ins("v_add_f32 v%d, v%d, v%d" % (64 + r, 64 + r, 72 + r))
        P.ins("v_add_f32 v%d, v%d, v%d" % (80 + r, 80 + r, 88 + r))
    for r in range(8):
        P.ins("v_add_f32 v%d, v%d, v%d" % (64 + r, 64 + r, 80 + r))
    for p in range(4):
        P.ins("v_cvt_pk_bf16_f32 v%d, v%d, v%d" % (96 + p, 64 + 2 * p, 64 + 2 * p + 1))
    P.ins("v_mul_u32_u24 v7, 1280, v18")
    P.ins("v_lshl_add_u32 v7, v19, 4, v7")
    P.ins("s_lshl_b32 s47, s16, 5")
    P.ins("v_add_u32 v7, s47, v7")
    P.vm("buffer_store_dwordx4 v[96:99], v7, s[24:27], 0 offen")
    P.label("O_end")
    P.ins("s_endpgm")
    return P.text()

HEAD = """; Kernarg layout for this problem (64 bytes, ptrs only, base s[0:1]):
; @launch kernel=attn_kernel grid=(256,1,1) block=(256,1,1) lds=163840
; @launch kernel=oproj_kernel grid=(240,1,1) block=(256,1,1) lds=131072
.amdgcn_target "amdgcn-amd-amdhsa--gfx950"
.text
"""
def kd(name, vg, acc):
    return """.amdhsa_kernel %s
  .amdhsa_next_free_vgpr %d
  .amdhsa_next_free_sgpr 64
  .amdhsa_accum_offset %d
  .amdhsa_group_segment_fixed_size 0
  .amdhsa_kernarg_size 64
  .amdhsa_user_sgpr_count 2
  .amdhsa_user_sgpr_kernarg_segment_ptr 1
  .amdhsa_system_sgpr_workgroup_id_x 1
.end_amdhsa_kernel
""" % (name, vg, acc)

if __name__ == "__main__":
    a, n1 = pad_hazards(gen_attn())
    o, n2 = pad_hazards(gen_oproj())
    print("pads", n1, n2, file=sys.stderr)
    s = HEAD + a + "\n" + o + '\n.section .rodata,"a"\n.p2align 6\n' + kd("attn_kernel", 512, 256) + ".p2align 6\n" + kd("oproj_kernel", 512, 256)
    open(sys.argv[1], "w").write(s)
```

```python
import sys
from asmlib import *

NVREG = 6
WBASE = 131072
SC = 0.08838834764831845 * 1.4426950408889634
import struct
def f32bits(x): return struct.unpack('<I', struct.pack('<f', x))[0]

def vr(b, n=1): return "v%d" % b if n == 1 else "v[%d:%d]" % (b, b + n - 1)
def ar(b, n=1): return "a%d" % b if n == 1 else "a[%d:%d]" % (b, b + n - 1)

class Item:
    def __init__(self, t, k='x', tag=None, need=(), needvm=()):
        self.t = t; self.k = k; self.tag = tag; self.need = need; self.needvm = needvm

def emit(P, items, tags):
    for it in items:
        if callable(it):
            it(); continue
        for n in it.need: P.wait_ds(tags[n])
        for n in it.needvm: P.wait_vm(tags[n])
        if it.k == 'ds':
            tg = P.ds(it.t)
        elif it.k == 'vm':
            tg = P.vm(it.t)
        else:
            P.ins(it.t); tg = None
        if it.tag is not None: tags[it.tag] = tg

import os
STAMP = int(os.environ.get("STAMP", "0"))
LIM = int(os.environ.get("LIM", "64"))
PX = os.environ.get("PX", "")
PRE = int(os.environ.get("PRE", "0"))
PLIM = int(os.environ.get("PLIM", "16"))
LIM2 = int(os.environ.get("LIM2", "64"))
class Stamper:
    def __init__(self): self.n = 0
    def stamp(self, P):
        if not STAMP: return
        P.wait_ds_all()
        P.ins("s_memtime s[%d:%d]" % (64 + 2 * self.n, 65 + 2 * self.n))
        P.ins("s_waitcnt lgkmcnt(0)")
        self.n += 1
    def dump(self, P, vtmp, kern):
        if not STAMP: return
        P.ins("v_mov_b32 v%d, 0" % vtmp)
        for i in range(self.n):
            P.ins("v_writelane_b32 v%d, s%d, %d" % (vtmp, 64 + 2 * i, i))
        P.ins("v_writelane_b32 v%d, s58, 30" % vtmp)
        P.ins("s_memrealtime s[56:57]")
        P.ins("s_waitcnt lgkmcnt(0)")
        P.ins("v_writelane_b32 v%d, s56, 31" % vtmp)
        P.ins("s_lshl_b32 s56, s2, 2")
        P.ins("s_add_u32 s56, s56, s16")
        P.ins("s_lshl_b32 s56, s56, 7")
        P.ins("v_lshlrev_b32 v%d, 2, v0" % (vtmp + 1))
        P.ins("v_cmp_gt_u32 vcc, 32, v0")
        P.ins("s_and_saveexec_b64 s[54:55], vcc")
        P.ins("buffer_store_dword v%d, v%d, s[60:63], s56 offen offset:0" % (vtmp, vtmp + 1))
        P.ins("s_mov_b64 exec, s[54:55]")
def stamp_setup(P, wslo, wshi, kern):
    if not STAMP: return
    P.ins("s_add_u32 s60, s%d, 0x%x" % (wslo, (16 + 1 * kern) << 20))
    P.ins("s_addc_u32 s61, s%d, 0" % wshi)
    P.ins("s_and_b32 s61, s61, 0xffff")
    P.ins("s_mov_b32 s62, 0x100000")
    P.ins("s_mov_b32 s63, 0x00020000")

def srd(P, d, blo, bhi, size):
    P.ins("s_mov_b32 s%d, s%d" % (d, blo))
    P.ins("s_and_b32 s%d, s%d, 0xffff" % (d + 1, bhi))
    if isinstance(size, str): P.ins("s_mov_b32 s%d, %s" % (d + 2, size))
    else: P.ins("s_mov_b32 s%d, 0x%x" % (d + 2, size))
    P.ins("s_mov_b32 s%d, 0x00020000" % (d + 3))

def gen_attn():
    P = Prog()
    P.raw(".globl attn_kernel\n.p2align 8\n.type attn_kernel,@function\nattn_kernel:")
    P.ins("s_cmp_ge_u32 s2, 256")
    P.ins("s_cbranch_scc1 A_end")
    P.ins("s_load_dwordx4 s[4:7], s[0:1], 0")
    P.ins("s_load_dwordx4 s[8:11], s[0:1], 16")
    P.ins("s_load_dwordx2 s[12:13], s[0:1], 56")
    if STAMP: P.ins("s_memrealtime s[58:59]")
    P.ins("s_and_b32 s14, s2, 7")
    P.ins("s_lshl_b32 s14, s14, 2")
    P.ins("s_bfe_u32 s15, s2, 0x20003")
    P.ins("s_add_u32 s14, s14, s15")
    P.ins("s_lshr_b32 s15, s2, 5")
    P.ins("v_lshrrev_b32 v1, 6, v0")
    P.ins("v_and_b32 v0, 63, v0")
    P.ins("s_nop 0")
    P.ins("v_readfirstlane_b32 s16, v1")
    P.ins("s_lshl_b32 s17, s15, 5")
    P.ins("s_add_u32 s17, s17, s14")
    P.ins("s_lshl_b32 s17, s17, 17")
    P.ins("s_mul_i32 s18, s15, 122880")
    P.ins("s_lshl_b32 s19, s14, 8")
    P.ins("s_mul_i32 s41, s15, 786432")
    P.ins("s_add_u32 s41, s41, s19")
    P.ins("s_waitcnt lgkmcnt(0)")
    stamp_setup(P, 12, 13, 0)
    srd(P, 48, 4, 5, 983040)
    P.ins("s_and_b32 s43, s2, 7")
    P.ins("s_lshl_b32 s43, s43, 10")
    P.ins("s_add_u32 s52, s10, s43"); P.ins("s_addc_u32 s53, s11, 0")
    P.ins("s_and_b32 s53, s53, 0xffff")
    P.ins("s_sub_u32 s54, 5242880, s43")
    P.ins("s_mov_b32 s55, 0x00020000")
    P.ins("s_add_u32 s4, s4, s18"); P.ins("s_addc_u32 s5, s5, 0")
    srd(P, 20, 4, 5, 122880)
    P.ins("s_add_u32 s6, s6, s17"); P.ins("s_addc_u32 s7, s7, 0")
    srd(P, 24, 6, 7, 131072)
    P.ins("s_add_u32 s8, s8, s17"); P.ins("s_addc_u32 s9, s9, 0")
    srd(P, 28, 8, 9, 131072)
    P.ins("s_add_u32 s10, s10, s19"); P.ins("s_addc_u32 s11, s11, 0")
    P.ins("s_sub_u32 s42, 5242880, s19")
    srd(P, 32, 10, 11, "s42")
    P.ins("s_add_u32 s12, s12, s41"); P.ins("s_addc_u32 s13, s13, 0")
    P.ins("s_sub_u32 s42, 786432, s19")
    srd(P, 36, 12, 13, "s42")
    P.ins("s_cmp_eq_u32 s16, 3")
    P.ins("s_cbranch_scc1 A_loader")
    pre = P.text()
    comp = gen_compute()
    load = gen_loader()
    return pre + comp + load + "A_end:\n    s_endpgm\n"

AK = 1
AV = 9
VO = 13
VM = 14
VL0 = 15; VL1 = 16
VMC = 17
VT = 18
QF = 24
SB = 56
TMP = 248
XF = 24
QACC = 184
AS = 0
AO = 64
AF = 128

def Sreg(kb, r=0, n=16):
    if kb < 12: return vr(SB + 16 * kb + r, n)
    return ar(AS + 16 * (kb - 12) + r, n)

def gen_compute():
    P = Prog()
    tags = {}
    ST = Stamper(); ST.stamp(P)
    P.ins("v_and_b32 v18, 31, v0")
    P.ins("v_lshrrev_b32 v19, 5, v0")
    P.ins("v_lshrrev_b32 v20, 4, v0")
    P.ins("v_and_b32 v21, 15, v0")
    P.ins("s_lshl_b32 s40, s16, 5")
    P.ins("v_add_u32 v22, s40, v18")
    P.ins("v_lshlrev_b32 v%d, 13, v22" % VO)
    P.ins("v_lshl_add_u32 v%d, v19, 4, v%d" % (VO, VO))
    P.ins("v_lshlrev_b32 v249, 2, v20")
    P.ins("v_xor_b32 v249, v21, v249")
    P.ins("v_lshlrev_b32 v249, 4, v249")
    P.ins("v_lshl_add_u32 v248, v20, 13, v249")
    def wtile(T):
        if T is None:
            P.ins("s_lshl_b32 m0, s46, 13")
            P.ins("s_add_u32 s40, s46, s45")
            P.ins("s_cmp_ge_u32 s40, 20")
            P.ins("s_cselect_b32 s41, 20, 0")
            P.ins("s_sub_u32 s40, s40, s41")
            P.ins("s_lshl_b32 s40, s40, 18")
            P.ins("s_add_u32 s46, s46, 1")
        else:
            P.ins("s_mov_b32 m0, %d" % (T * 8192))
            P.ins("s_mov_b32 s40, %d" % (T * 32 * 8192))
        for i in range(8):
            P.vm("buffer_load_dwordx4 v248, s[32:35], s40 offen lds")
            if i < 7:
                P.ins("s_add_u32 m0, m0, 1024")
                P.ins("s_add_u32 s40, s40, 32768")
    P.ins("s_and_b32 s43, s14, 3")
    P.ins("s_add_u32 s43, s43, s15")
    for _ in range(2):
        P.ins("s_cmp_ge_u32 s43, 5")
        P.ins("s_cselect_b32 s40, 5, 0")
        P.ins("s_sub_u32 s43, s43, s40")
    P.ins("s_lshl_b32 s45, s43, 2")
    P.ins("s_lshl_b32 s40, s16, 5")
    for j in range(4):
        P.ins("v_add_u32 v249, %d, v20" % (4 * j))
        P.ins("v_xor_b32 v254, v249, v21")
        P.ins("v_add_u32 v249, s40, v249")
        P.ins("v_mul_u32_u24 v249, 1280, v249")
        P.ins("v_lshl_add_u32 v%d, v254, 4, v249" % (250 + j))
    P.ins("s_add_u32 s47, s16, 1")
    P.ins("s_mul_i32 s47, s47, 40960")
    P.ins("s_mov_b32 m0, s47")
    P.ins("s_lshl_b32 s40, s43, 8")
    ST.stamp(P)
    for c in range(5):
        for i in range(8):
            if i == 4: P.ins("s_add_u32 s41, s40, 20480")
            if 'x' not in PX:
                P.vm("buffer_load_dwordx4 v%d, s[20:23], %s offen lds" % (250 + (i & 3), "s40" if i < 4 else "s41"))
            if not (c == 4 and i == 7): P.ins("s_add_u32 m0, m0, 1024")
        if c < 4:
            P.ins("s_add_u32 s40, s40, 256")
            P.ins("s_cmp_ge_u32 s40, 1280")
            P.ins("s_cselect_b32 s41, 1280, 0")
            P.ins("s_sub_u32 s40, s40, s41")
    ST.stamp(P)
    P.ins("s_mov_b32 s46, s16")
    if 'w' not in PX: wtile(None)
    P.ins("s_add_u32 s46, s16, 3")
    P.ins("s_cmp_eq_u32 s16, 2")
    P.ins("s_cselect_b32 s46, 2, s46")
    if 'w' not in PX: wtile(None)
    ST.stamp(P)
    P.ins("v_and_b32 v249, 1, v0")
    P.ins("v_bfe_u32 v250, v0, 1, 1")
    P.ins("v_lshrrev_b32 v251, 2, v21")
    P.ins("v_and_b32 v252, 1, v20")
    P.ins("v_lshl_or_b32 v252, v252, 1, v249")
    P.ins("v_lshlrev_b32 v252, 4, v252")
    P.ins("v_lshl_add_u32 v252, v250, 3, v252")
    P.ins("v_lshrrev_b32 v253, 1, v20")
    P.ins("v_lshl_add_u32 v254, v253, 3, v251")
    P.ins("v_lshl_add_u32 v254, v254, 8, v252")
    P.ins("v_lshl_add_u32 v255, v253, 2, v251")
    P.ins("v_lshl_add_u32 v255, v255, 8, v252")
    for db in range(4):
        P.ins("v_xor_b32 v249, %d, v251" % db)
        P.ins("v_lshl_add_u32 v%d, v249, 6, v254" % (AV + db))
    P.ins("v_mov_b32 v16, v255")
    P.ins("v_mov_b32 v17, v251")
    for s in range(8):
        P.ins("v_add_u32 v249, %d, v19" % (2 * s))
        P.ins("v_xor_b32 v249, v249, v21")
        P.ins("v_lshlrev_b32 v249, 4, v249")
        P.ins("v_lshl_add_u32 v%d, v18, 8, v249" % (AK + s))
    P.ins("s_mov_b32 s44, 0x%x" % f32bits(SC))
    ST.stamp(P)
    for s in range(8): P.ins("v_add_u32 v%d, s47, v%d" % (AK + s, AK + s))
    for c in range(5):
        P.ins("s_waitcnt vmcnt(%d)" % (16 + 32 - 8 * c))
        for s in range(8):
            P.ds("ds_read_b128 %s, v%d offset:%d" % (vr(XF + 4 * (8 * c + s), 4), AK + s, c * 8192))
    P.wait_ds_all()
    for s in range(8): P.ins("v_subrev_u32 v%d, s47, v%d" % (AK + s, AK + s))
    ST.stamp(P)
    P.ins("s_mul_i32 s46, s16, 5")
    P.ins("s_add_u32 s46, s46, 5")
    if 'v' not in PX:
        for n in range(5): wtile(None)
    if PX:
        P.wait_vm_all(); ST.stamp(P)
    P.ins("s_waitcnt vmcnt(40)")
    P.ins("s_barrier")
    ST.stamp(P)
    if PX:
        ST.dump(P, 200, 0)
        P.ins("s_endpgm")
        return P.text()
    def wreads(t):
        its = []
        buf = t % 2
        if t in (8, 16):
            for db in range(4):
                its.append(Item("v_add_u32 v%d, 0x10000, v%d" % (AV + db, AV + db)))
        for ks2 in range(2):
            for db in range(4):
                for r2 in range(2):
                    its.append(Item("ds_read_b64_tr_b16 %s, v%d offset:%d" % (
                        ar(AF + 32 * buf + (ks2 * 4 + db) * 4 + 2 * r2, 2), AV + db,
                        (t % 8) * 8192 + ks2 * 4096 + r2 * 1024), 'ds', tag=('w', t, ks2, db)))
        return its
    def wmfma(t):
        its = []
        buf = t % 2
        for ks2 in range(2):
            for db in range(4):
                c = "0" if (t == 0 and ks2 == 0) else vr(QACC + 16 * db, 16)
                its.append(Item("v_mfma_f32_32x32x16_bf16 %s, %s, %s, %s" % (
                    vr(QACC + 16 * db, 16), ar(AF + 32 * buf + (ks2 * 4 + db) * 4, 4),
                    vr(XF + 4 * (2 * t + ks2), 4), c), need=[('w', t, ks2, db)]))
        return its
    def qbar():
        P.wait_vm_all()
        P.wait_ds_all()
        P.ins("s_barrier")
    emit(P, wreads(0), tags)
    for t in range(20):
        mf = wmfma(t)
        rd = wreads(t + 1) if t < 19 else []
        bnd = (t + 1) in (5, 20)
        g0 = 3 if bnd else 0
        seq = []
        per = (len(rd) + 3) // 4
        for n, m in enumerate(mf):
            seq.append(m)
            if bnd and n == g0 - 1: seq.append(qbar)
            if g0 <= n < g0 + 4: seq += rd[per * (n - g0):per * (n - g0 + 1)]
        emit(P, seq, tags)
    for db in range(4):
        P.ins("v_xor_b32 v249, %d, v17" % db)
        P.ins("v_lshl_add_u32 v%d, v249, 6, v16" % (AV + db))
        P.ins("v_add_u32 v%d, 0x%x, v%d" % (AV + db, 131072, AV + db))
    P.ins("v_mov_b32 v%d, 0xff800000" % VM)
    for s in range(8):
        for p in range(4):
            a = QACC + 16 * (s >> 1) + 8 * (s & 1) + 2 * p
            P.ins("v_cvt_pk_bf16_f32 v%d, v%d, v%d" % (QF + 4 * s + p, a, a + 1))
    ST.stamp(P)
    VMCE = 248; VLE = 250
    VMCL = 24; VLL = 26
    VM2 = 15; VC = 16
    AO2 = 192
    P.ins("s_mov_b32 s45, s44")
    P.ins("v_mov_b32 v%d, 0xff800000" % VM2)
    def kreads(kb):
        its = []
        for s in range(8):
            its.append(Item("ds_read_b128 %s, v%d offset:%d" % (ar(AF + 32 * (kb % 2) + 4 * s, 4), AK + s, (kb % 8) * 8192),
                            'ds', tag=('k', kb, s)))
        return its
    def smfma(kb):
        its = []
        for s in range(8):
            c = "0" if s == 0 else Sreg(kb)
            its.append(Item("v_mfma_f32_32x32x16_bf16 %s, %s, %s, %s" % (
                Sreg(kb), ar(AF + 32 * (kb % 2) + 4 * s, 4), vr(QF + 4 * s, 4), c), need=[('k', kb, s)]))
        return its
    def maxops(kb):
        its = []
        M = VM if kb < 8 else VM2
        for p in range(8):
            if kb < 12:
                a = SB + 16 * kb + 2 * p
                its.append(Item("v_max3_f32 v%d, v%d, v%d, v%d" % (M, a, a + 1, M)))
            else:
                a = AS + 16 * (kb - 12) + 2 * p
                t0 = 252 + 2 * (p % 2)
                its.append(Item("v_accvgpr_read_b32 v%d, a%d" % (t0, a)))
                its.append(Item("v_accvgpr_read_b32 v%d, a%d" % (t0 + 1, a + 1)))
                its.append(Item("v_max3_f32 v%d, v%d, v%d, v%d" % (M, t0, t0 + 1, M)))
        return its
    def xmax(M):
        return [Item("v_mov_b32 v%d, v%d" % (VT, M)), Item("v_mov_b32 v%d, v%d" % (VT + 1, M)),
                Item("v_permlane32_swap_b32 v%d, v%d" % (VT, VT + 1)),
                Item("v_max_f32 v%d, v%d, v%d" % (M, VT, VT + 1))]
    def barrier():
        P.wait_ds_all()
        P.ins("s_barrier")
    def Preg(kk):
        kb = kk >> 1; u = kk & 1
        if kb < 12: return SB + 16 * kb + 4 * u
        i2 = 2 * (kb - 12) + u
        return SB + 16 * i2 + 8
    def eops(kb):
        its = []
        MC, L = (VMCE, VLE) if kb < 8 else (VMCL, VLL)
        if kb < 12:
            regs = [SB + 16 * kb + r for r in range(16)]
        else:
            regs = [SB + 16 * (2 * (kb - 12) + (r >> 3)) + 8 + (r & 7) for r in range(16)]
        def dst(p):
            if kb < 12: return SB + 16 * kb + p
            return SB + 16 * (2 * (kb - 12) + (p >> 2)) + 8 + (p & 3)
        for p in range(11):
            if p < 8:
                a = regs[2 * p]
                if kb >= 12:
                    its.append(Item("v_accvgpr_read_b32 v%d, a%d" % (a, AS + 16 * (kb - 12) + 2 * p)))
                    its.append(Item("v_accvgpr_read_b32 v%d, a%d" % (a + 1, AS + 16 * (kb - 12) + 2 * p + 1)))
                its.append(Item("v_pk_fma_f32 %s, %s, s[44:45], %s neg_lo:[0,0,1] neg_hi:[0,0,1]" % (vr(a, 2), vr(a, 2), vr(MC, 2))))
            if 0 <= p - 1 < 8:
                a = regs[2 * (p - 1)]
                its.append(Item("v_exp_f32 v%d, v%d" % (a, a)))
                its.append(Item("v_exp_f32 v%d, v%d" % (a + 1, a + 1)))
            if 0 <= p - 2 < 8:
                a = regs[2 * (p - 2)]
                its.append(Item("v_pk_add_f32 %s, %s, %s" % (vr(L, 2), vr(L, 2), vr(a, 2))))
            if 0 <= p - 3 < 8:
                q = p - 3
                its.append(Item("v_cvt_pk_bf16_f32 v%d, v%d, v%d" % (dst(q), regs[2 * q], regs[2 * q + 1])))
        return its
    barrier()
    emit(P, kreads(0), tags)
    for kb in range(16):
        mf = smfma(kb)
        seq = []
        nxt = kb + 1
        pre_items = []
        if nxt < 16:
            if nxt in (2, 6, 10, 14):
                pre_items.append(barrier)
            if nxt == 8:
                for s in range(8):
                    pre_items.append(Item("v_add_u32 v%d, 0x10000, v%d" % (AK + s, AK + s)))
            rd = kreads(nxt)
        else:
            rd = []
        fill = maxops(kb - 1) if kb >= 1 else []
        if kb == 8:
            fill += xmax(VM) + [Item("v_mul_f32 v%d, s44, v%d" % (VMCE, VM)), Item("v_mul_f32 v%d, s44, v%d" % (VMCE + 1, VM)),
                                Item("v_mov_b32 v%d, 0" % VLE), Item("v_mov_b32 v%d, 0" % (VLE + 1))]
        if kb >= 9: fill += eops(kb - 9)
        seq += pre_items
        for n, m in enumerate(mf):
            seq.append(m)
            if n < 4: seq += rd[2 * n:2 * n + 2]
            if n >= 2:
                k0 = (len(fill) * (n - 2)) // 6; k1 = (len(fill) * (n - 1)) // 6
                seq += fill[k0:k1]
        emit(P, seq, tags)
    e7 = eops(7)
    emit(P, e7[:12] + maxops(15) + e7[12:] + xmax(VM2), tags)
    P.ins("v_max_f32 v%d, v%d, v%d" % (VM2, VM, VM2))
    P.ins("v_mul_f32 v%d, s44, v%d" % (VMCL, VM2))
    P.ins("v_mul_f32 v%d, s44, v%d" % (VMCL + 1, VM2))
    P.ins("v_sub_f32 v%d, v%d, v%d" % (VC, VMCE, VMCL))
    P.ins("v_exp_f32 v%d, v%d" % (VC, VC))
    P.ins("v_mov_b32 v%d, 0" % VLL)
    P.ins("v_mov_b32 v%d, 0" % (VLL + 1))
    ST.stamp(P)
    def vbase(j): return (j - 2) * 16384 if j >= 2 else 131072 + j * 16384
    def vreads(kk):
        its = []
        for db in range(4):
            for r2 in range(2):
                its.append(Item("ds_read_b64_tr_b16 %s, v%d offset:%d" % (
                    ar(AF + 16 * (kk % 4) + 4 * db + 2 * r2, 2), AV + db, (kk & 3) * 4096 + r2 * 2048),
                    'ds', tag=('v', kk, db)))
        return its
    def pmfma(kk):
        its = []
        A = AO if kk < 16 else AO2
        for db in range(4):
            c = "0" if kk in (0, 16) else ar(A + 16 * db, 16)
            its.append(Item("v_mfma_f32_32x32x16_bf16 %s, %s, %s, %s" % (
                ar(A + 16 * db, 16), ar(AF + 16 * (kk % 4) + 4 * db, 4), vr(Preg(kk), 4), c), need=[('v', kk, db)]))
        return its
    def pbar(j):
        def f():
            if j not in (1, 3): P.ins("s_barrier")
            if j > 0:
                d = vbase(j) - vbase(j - 1)
                for db in range(4):
                    P.ins("v_add_u32 v%d, 0x%x, v%d" % (AV + db, d & 0xffffffff, AV + db))
        return f
    ework = []
    for kb in range(8, 16): ework += [(kb, it) for it in eops(kb)]
    emit(P, [pbar(0)] + vreads(0) + vreads(1), tags)
    epos = 0
    acc = 0.0
    blk_len = len(eops(8))
    for kk in range(32):
        mf = pmfma(kk)
        fill = []
        acc += 0.42 * blk_len
        tgt = int(acc)
        must = (kk + 1) >> 1
        while epos < len(ework) and (epos < tgt or ework[epos][0] <= must):
            fill.append(ework[epos][1]); epos += 1
        pre_items = []
        rd = []
        n2 = kk + 2
        if n2 < 32:
            if n2 % 4 == 0: pre_items.append(pbar(n2 // 4))
            rd = vreads(n2)
        seq = list(pre_items)
        fl = rd + fill
        seq += interleave(mf, fl)
        emit(P, seq, tags)
        if kk % 8 == 7: ST.stamp(P)
    assert epos == len(ework)
    P.ins("v_add_f32 v%d, v%d, v%d" % (VLE, VLE, VLE + 1))
    P.ins("v_add_f32 v%d, v%d, v%d" % (VLL, VLL, VLL + 1))
    P.ins("v_fma_f32 v%d, v%d, v%d, v%d" % (VLE, VLE, VC, VLL))
    P.ins("v_mov_b32 v%d, v%d" % (VT, VLE))
    P.ins("v_mov_b32 v%d, v%d" % (VT + 1, VLE))
    P.ins("v_permlane32_swap_b32 v%d, v%d" % (VT, VT + 1))
    P.ins("v_add_f32 v%d, v%d, v%d" % (VLE, VT, VT + 1))
    P.ins("v_rcp_f32 v%d, v%d" % (VLL, VLE))
    P.ins("v_mul_f32 v%d, v%d, v%d" % (VC, VC, VLL))
    P.ins("v_mov_b32 v%d, v%d" % (VLL + 1, VLL))
    P.ins("v_mov_b32 v%d, v%d" % (VLE, VC))
    P.ins("v_mov_b32 v%d, v%d" % (VLE + 1, VC))
    for db in range(4):
        base = SB + 32 * db
        for r in range(16):
            P.ins("v_accvgpr_read_b32 v%d, a%d" % (base + r, AO + 16 * db + r))
        for r in range(16):
            P.ins("v_accvgpr_read_b32 v%d, a%d" % (base + 16 + r, AO2 + 16 * db + r))
        for p in range(8):
            P.ins("v_pk_mul_f32 %s, %s, %s" % (vr(base + 2 * p, 2), vr(base + 2 * p, 2), vr(VLE, 2)))
        for p in range(8):
            P.ins("v_pk_fma_f32 %s, %s, %s, %s" % (vr(base + 2 * p, 2), vr(base + 16 + 2 * p, 2), vr(VLL, 2), vr(base + 2 * p, 2)))
        ob = SB + 128 + 8 * db
        for p in range(8):
            P.ins("v_cvt_pk_bf16_f32 v%d, v%d, v%d" % (ob + p, base + 2 * p, base + 2 * p + 1))
        for u in range(2):
            P.vm("buffer_store_dwordx4 %s, v%d, s[36:39], 0 offen offset:%d" % (vr(ob + 4 * u, 4), VO, db * 64 + u * 32))
    ST.stamp(P)
    if STAMP: P.wait_vm_all()
    ST.stamp(P)
    ST.dump(P, 200, 0)
    P.ins("s_endpgm")
    return P.text()

def gen_loader():
    P = Prog()
    P.label("A_loader")
    tags = {}
    ST = Stamper(); ST.stamp(P)
    P.ins("v_lshrrev_b32 v1, 4, v0")
    P.ins("v_and_b32 v2, 15, v0")
    P.ins("v_lshlrev_b32 v8, 4, v0")
    def vstage(bf, i):
        n = bf * 16 + i
        if n < 58: return vr(24 + 4 * n, 4)
        return ar(4 * (n - 58), 4)
    bufof = {}
    def toreg(n, bf):
        bufof[n] = bf
        sr = "s[24:27]" if n < 8 else "s[28:31]"
        for g in range(4):
            P.wait_vm(P.vm_issued - (LIM - 4))
            P.ins("s_mov_b32 s40, %d" % ((n % 8) * 16384 + g * 4096))
            for i in range(4):
                tags[n] = P.vm("buffer_load_dwordx4 %s, v8, %s, s40 offen offset:%d nt" % (vstage(bf, 4 * g + i), sr, i * 1024))
    for i in range(4):
        P.ins("v_add_u32 v3, %d, v1" % (4 * i))
        P.ins("v_xor_b32 v3, v3, v2")
        P.ins("v_lshlrev_b32 v3, 4, v3")
        P.ins("v_lshl_add_u32 v%d, v1, 8, v3" % (4 + i))
        P.ins("v_add_u32 v%d, 0x10000, v%d" % (12 + i, 4 + i))
    P.ins("v_lshlrev_b32 v3, 2, v1")
    P.ins("v_xor_b32 v3, v3, v2")
    P.ins("v_lshlrev_b32 v3, 4, v3")
    P.ins("v_lshl_add_u32 v9, v1, 8, v3")
    P.ins("v_add_u32 v10, 0x20000, v9")
    def dump(n):
        P.wait_vm(tags[n])
        bf = bufof[n]
        for i in range(16):
            if n < 8:
                a = (4 if n < 4 else 12) + (i & 3)
                P.ds("ds_write_b128 v%d, %s offset:%d" % (a, vstage(bf, i), (n % 4) * 16384 + i * 1024))
            elif n < 10:
                P.ds("ds_write_b128 v10, %s offset:%d" % (vstage(bf, i), (n - 8) * 16384 + i * 1024))
            else:
                P.ds("ds_write_b128 v9, %s offset:%d" % (vstage(bf, i), (n - 10) * 16384 + i * 1024))
        P.wait_ds_all()
    def vdma(j):
        for g in range(4):
            P.wait_vm(P.vm_issued - (LIM2 - 4))
            P.ins("s_mov_b32 m0, %d" % ((j - 2) * 16384 + g * 4096))
            P.ins("s_mov_b32 s40, %d" % (j * 16384 + g * 4096))
            for i in range(4):
                tags[8 + j] = P.vm("buffer_load_dwordx4 v9, s[28:31], s40 offen offset:%d nt lds" % (i * 1024))
    def bar():
        P.ins("s_barrier"); ST.stamp(P)
    ST.stamp(P)
    global LIM
    sv = LIM; LIM = PLIM
    for n in range(PRE): toreg(n, n)
    LIM = sv
    bar()
    if PX:
        ST.dump(P, 16, 0)
        P.ins("s_endpgm")
        return P.text()
    for n in range(PRE, PRE + 3): toreg(n, n)
    bar()
    for n in range(PRE + 3, 7): toreg(n, n)
    bar()
    dump(0); bar()
    dump(1); dump(2); bar()
    toreg(7, 0); dump(3); toreg(8, 1); dump(4); bar()
    toreg(9, 2); dump(5); toreg(10, 3); dump(6); bar()
    toreg(11, 4); dump(7); bar()
    toreg(12, 5); dump(8); toreg(13, 6); dump(9); bar()
    vdma(6); dump(10); vdma(7); dump(11); bar()
    dump(12); bar()
    dump(13); bar()
    for j in range(6, 8):
        P.wait_vm(tags[8 + j]); bar()
    ST.dump(P, 16, 0)
    P.ins("s_endpgm")
    return P.text()

def gen_oproj():
    P = Prog()
    tags = {}
    P.raw(".globl oproj_kernel\n.p2align 8\n.type oproj_kernel,@function\noproj_kernel:")
    P.ins("s_cmp_ge_u32 s2, 240")
    P.ins("s_cbranch_scc1 O_end")
    P.ins("s_load_dwordx4 s[4:7], s[0:1], 32")
    P.ins("s_load_dwordx2 s[8:9], s[0:1], 56")
    if STAMP: P.ins("s_memrealtime s[58:59]")
    ST = Stamper()
    P.ins("s_and_b32 s14, s2, 7")
    P.ins("s_lshr_b32 s15, s2, 3")
    P.ins("s_mul_i32 s16, s15, 52")
    P.ins("s_lshr_b32 s16, s16, 8")
    P.ins("s_mul_i32 s17, s16, 5")
    P.ins("s_sub_u32 s17, s15, s17")
    P.ins("s_mul_i32 s48, s16, 3")
    P.ins("s_mul_i32 s49, s17, 5")
    P.ins("s_add_u32 s48, s48, s49")
    P.ins("s_lshr_b32 s18, s14, 1")
    P.ins("s_mul_i32 s18, s18, 192")
    P.ins("s_lshl_b32 s19, s16, 5")
    P.ins("s_add_u32 s18, s18, s19")
    P.ins("s_and_b32 s19, s14, 1")
    P.ins("s_mul_i32 s19, s19, 320")
    P.ins("s_lshl_b32 s17, s17, 6")
    P.ins("s_add_u32 s19, s19, s17")
    P.ins("v_lshrrev_b32 v1, 6, v0")
    P.ins("v_and_b32 v0, 63, v0")
    P.ins("s_nop 0")
    P.ins("v_readfirstlane_b32 s16, v1")
    P.ins("s_lshl_b32 s40, s18, 13")
    P.ins("s_lshl_b32 s45, s16, 11")
    P.ins("s_add_u32 s40, s40, s45")
    P.ins("s_mul_i32 s41, s18, 1280")
    P.ins("s_lshl_b32 s42, s19, 1")
    P.ins("s_add_u32 s41, s41, s42")
    P.ins("s_mul_i32 s43, s16, %d" % (1024 * 1280))
    P.ins("s_add_u32 s43, s43, s42")
    P.ins("s_mul_i32 s46, s16, 40960")
    P.ins("v_and_b32 v18, 31, v0")
    P.ins("v_lshrrev_b32 v19, 5, v0")
    P.ins("v_lshrrev_b32 v20, 4, v0")
    P.ins("v_and_b32 v21, 15, v0")
    P.ins("v_lshrrev_b32 v3, 3, v0")
    P.ins("v_bfe_u32 v4, v0, 4, 1")
    P.ins("v_lshlrev_b32 v4, 2, v4")
    P.ins("v_and_b32 v5, 7, v0")
    P.ins("v_xor_b32 v4, v4, v5")
    P.ins("v_lshlrev_b32 v4, 4, v4")
    P.ins("v_mul_u32_u24 v6, 1280, v3")
    P.ins("v_add_u32 v24, v6, v4")
    for i in range(1, 4):
        P.ins("v_add_u32 v%d, %d, v24" % (24 + i, i * (10240 - 1024)))
    for j in range(4):
        P.ins("v_add_u32 v4, %d, v20" % (4 * (j & 1)))
        P.ins("v_xor_b32 v4, v4, v5")
        P.ins("v_lshlrev_b32 v4, 4, v4")
        P.ins("v_lshl_add_u32 v4, v3, 13, v4")
        P.ins("v_add_u32 v%d, %d, v4" % (28 + j, j * (65536 - 1024)))
    P.ins("s_waitcnt lgkmcnt(0)")
    stamp_setup(P, 8, 9, 1)
    ST.stamp(P)
    P.ins("s_add_u32 s4, s4, s43"); P.ins("s_addc_u32 s5, s5, 0")
    P.ins("s_sub_u32 s44, 5242880, s43")
    srd(P, 20, 4, 5, "s44")
    P.ins("s_add_u32 s8, s8, s40"); P.ins("s_addc_u32 s9, s9, 0")
    P.ins("s_sub_u32 s44, %d, s45" % (32 * 8192))
    srd(P, 28, 8, 9, "s44")
    NS = 3
    SL = 12288
    def dma(t):
        sl = (t % NS) * SL
        P.ins("s_add_u32 s47, s48, %d" % t)
        P.ins("s_and_b32 s47, s47, 15")
        P.ins("s_mul_i32 s49, s47, 81920")
        P.ins("s_lshl_b32 s47, s47, 7")
        P.ins("s_add_u32 m0, s46, %d" % (sl + 8192))
        for j in range(4):
            P.vm("buffer_load_dwordx4 v%d, s[28:31], s47 offen offset:%d lds" % (28 + j, j * 1024))
            if t == 0 and j in (0, 3): ST.stamp(P)
        for sub in range(2):
            P.ins("s_add_u32 m0, s46, %d" % (sl + 4096 * sub))
            if sub: P.ins("s_add_u32 s49, s49, 40960")
            for i in range(4):
                tags[('T', t)] = P.vm("buffer_load_dwordx4 v%d, s[20:23], s49 offen offset:%d lds" % (24 + i, i * 1024))
    ST.stamp(P)
    for t in range(NS):
        dma(t); ST.stamp(P)
    P.ins("s_add_u32 s6, s6, s41"); P.ins("s_addc_u32 s7, s7, 0")
    P.ins("s_sub_u32 s44, 983040, s41")
    srd(P, 24, 6, 7, "s44")
    P.ins("v_and_b32 v6, 1, v0")
    P.ins("v_bfe_u32 v7, v0, 1, 1")
    P.ins("v_lshrrev_b32 v8, 2, v21")
    P.ins("v_and_b32 v9, 1, v20")
    P.ins("v_lshl_or_b32 v9, v9, 1, v6")
    P.ins("v_lshlrev_b32 v9, 4, v9")
    P.ins("v_lshl_add_u32 v9, v7, 3, v9")
    P.ins("v_lshrrev_b32 v10, 1, v20")
    P.ins("v_lshl_add_u32 v10, v10, 3, v8")
    P.ins("v_lshl_add_u32 v9, v10, 7, v9")
    P.ins("v_add_u32 v9, s46, v9")
    P.ins("v_bfe_u32 v10, v0, 3, 1")
    for nb in range(2):
        P.ins("v_xor_b32 v11, %d, v10" % nb)
        P.ins("v_lshl_add_u32 v%d, v11, 6, v9" % (12 + nb))
    P.ins("v_bfe_u32 v6, v0, 1, 3")
    P.ins("v_lshlrev_b32 v7, 7, v18")
    P.ins("v_add_u32 v7, s46, v7")
    for ks in range(4):
        P.ins("v_add_u32 v8, %d, v19" % (2 * ks))
        P.ins("v_xor_b32 v8, v8, v6")
        P.ins("v_lshl_add_u32 v%d, v8, 4, v7" % (14 + ks))
    ACC = 32
    FR = 64
    FB = 96
    ST.stamp(P)
    for t in range(16):
        sl = (t % NS) * SL
        P.wait_vm(tags[('T', t)])
        if t == 0: ST.stamp(P)
        seq = []
        for ks in range(4):
            seq.append(Item("ds_read_b128 %s, v%d offset:%d" % (vr(FB + 4 * ks, 4), 14 + ks, sl + 8192), 'ds'))
            for nb in range(2):
                for r2 in range(2):
                    seq.append(Item("ds_read_b64_tr_b16 %s, v%d offset:%d" % (
                        vr(FR + (ks * 2 + nb) * 4 + 2 * r2, 2), 12 + nb,
                        sl + (ks >> 1) * 4096 + (ks & 1) * 2048 + r2 * 512), 'ds', tag=('r', t, ks, nb)))
        n = 0
        for ks in range(4):
            for nb in range(2):
                c = "0" if (t == 0 and ks == 0) else vr(ACC + 16 * nb, 16)
                seq.append(Item("v_mfma_f32_32x32x16_bf16 %s, %s, %s, %s" % (
                    vr(ACC + 16 * nb, 16), vr(FR + (ks * 2 + nb) * 4, 4), vr(FB + 4 * ks, 4), c),
                    need=[('r', t, ks, nb)]))
                n += 1
                if n == 4 and t + NS < 16:
                    def f(t=t):
                        P.wait_ds_all()
                        dma(t + NS)
                    seq.append(f)
        emit(P, seq, tags)
        if t % 2 == 1: ST.stamp(P)
    P.ins("v_lshlrev_b32 v4, 4, v0")
    P.ins("v_add_u32 v5, s46, v4")
    for j in range(8):
        P.ds("ds_write_b128 v5, %s offset:%d" % (vr(ACC + 4 * j, 4), j * 1024))
    P.wait_ds_all()
    P.ins("s_barrier")
    P.ins("s_lshl_b32 s47, s16, 11")
    P.ins("v_add_u32 v5, s47, v4")
    P.ins("v_add_u32 v6, 81920, v5")
    for w in range(4):
        for q in range(2):
            a = "v5" if w < 2 else "v6"
            P.ds("ds_read_b128 %s, %s offset:%d" % (vr(64 + 8 * w + 4 * q, 4), a, (w % 2) * 40960 + q * 1024))
    P.wait_ds_all()
    for r in range(8):
        P.ins("v_add_f32 v%d, v%d, v%d" % (64 + r, 64 + r, 72 + r))
        P.ins("v_add_f32 v%d, v%d, v%d" % (80 + r, 80 + r, 88 + r))
    for r in range(8):
        P.ins("v_add_f32 v%d, v%d, v%d" % (64 + r, 64 + r, 80 + r))
    for p in range(4):
        P.ins("v_cvt_pk_bf16_f32 v%d, v%d, v%d" % (96 + p, 64 + 2 * p, 64 + 2 * p + 1))
    P.ins("v_mul_u32_u24 v7, 1280, v18")
    P.ins("v_lshl_add_u32 v7, v19, 4, v7")
    P.ins("s_lshl_b32 s47, s16, 5")
    P.ins("v_add_u32 v7, s47, v7")
    P.vm("buffer_store_dwordx4 v[96:99], v7, s[24:27], 0 offen")
    ST.stamp(P)
    if STAMP: P.wait_vm_all()
    ST.stamp(P)
    ST.dump(P, 100, 1)
    P.label("O_end")
    P.ins("s_endpgm")
    return P.text()

HEAD = """; Kernarg layout for this problem (64 bytes, ptrs only, base s[0:1]):
; @launch kernel=attn_kernel grid=(256,1,1) block=(256,1,1) lds=163840
; @launch kernel=oproj_kernel grid=(240,1,1) block=(256,1,1) lds=163840
.amdgcn_target "amdgcn-amd-amdhsa--gfx950"
.text
"""
def kd(name, vg, acc):
    return """.amdhsa_kernel %s
  .amdhsa_next_free_vgpr %d
  .amdhsa_next_free_sgpr 102
  .amdhsa_accum_offset %d
  .amdhsa_group_segment_fixed_size 0
  .amdhsa_kernarg_size 64
  .amdhsa_user_sgpr_count 2
  .amdhsa_user_sgpr_kernarg_segment_ptr 1
  .amdhsa_system_sgpr_workgroup_id_x 1
.end_amdhsa_kernel
""" % (name, vg, acc)

if __name__ == "__main__":
    a, n1 = pad_hazards(gen_attn())
    o, n2 = pad_hazards(gen_oproj())
    print("pads", n1, n2, file=sys.stderr)
    s = HEAD + a + "\n" + o + '\n.section .rodata,"a"\n.p2align 6\n' + kd("attn_kernel", 512, 256) + ".p2align 6\n" + kd("oproj_kernel", 128, 128)
    open(sys.argv[1], "w").write(s)
```

```python
import sys
from asmlib import *

NVREG = 6
WBASE = 131072
SC = 0.08838834764831845 * 1.4426950408889634
import struct
def f32bits(x): return struct.unpack('<I', struct.pack('<f', x))[0]

def vr(b, n=1): return "v%d" % b if n == 1 else "v[%d:%d]" % (b, b + n - 1)
def ar(b, n=1): return "a%d" % b if n == 1 else "a[%d:%d]" % (b, b + n - 1)

class Item:
    def __init__(self, t, k='x', tag=None, need=(), needvm=()):
        self.t = t; self.k = k; self.tag = tag; self.need = need; self.needvm = needvm

def emit(P, items, tags):
    for it in items:
        if callable(it):
            it(); continue
        for n in it.need: P.wait_ds(tags[n])
        for n in it.needvm: P.wait_vm(tags[n])
        if it.k == 'ds':
            tg = P.ds(it.t)
        elif it.k == 'vm':
            tg = P.vm(it.t)
        else:
            P.ins(it.t); tg = None
        if it.tag is not None: tags[it.tag] = tg

import os
STAMP = int(os.environ.get("STAMP", "0"))
LIM = int(os.environ.get("LIM", "64"))
PX = ""
B0E = int(os.environ.get("B0E", "0"))
FUSED = int(os.environ.get("FUSED", "1"))
KNAME = "standalone__gqa_block_cached__near_ridge_kernel" if FUSED else "attn_kernel"
PRE = int(os.environ.get("PRE", "0"))
PLIM = int(os.environ.get("PLIM", "16"))
LIM2 = int(os.environ.get("LIM2", "64"))
class Stamper:
    def __init__(self): self.n = 0
    def stamp(self, P):
        if not STAMP: return
        P.wait_ds_all()
        P.ins("s_memtime s[%d:%d]" % (64 + 2 * self.n, 65 + 2 * self.n))
        P.ins("s_waitcnt lgkmcnt(0)")
        self.n += 1
    def dump(self, P, vtmp, kern):
        if not STAMP: return
        P.ins("v_mov_b32 v%d, 0" % vtmp)
        for i in range(self.n):
            P.ins("v_writelane_b32 v%d, s%d, %d" % (vtmp, 64 + 2 * i, i))
        P.ins("v_writelane_b32 v%d, s58, 30" % vtmp)
        P.ins("s_memrealtime s[56:57]")
        P.ins("s_waitcnt lgkmcnt(0)")
        P.ins("v_writelane_b32 v%d, s56, 31" % vtmp)
        P.ins("s_lshl_b32 s56, s2, 2")
        P.ins("s_add_u32 s56, s56, s16")
        P.ins("s_lshl_b32 s56, s56, 7")
        P.ins("v_lshlrev_b32 v%d, 2, v0" % (vtmp + 1))
        P.ins("v_cmp_gt_u32 vcc, 32, v0")
        P.ins("s_and_saveexec_b64 s[54:55], vcc")
        P.ins("buffer_store_dword v%d, v%d, s[60:63], s56 offen offset:0" % (vtmp, vtmp + 1))
        P.ins("s_mov_b64 exec, s[54:55]")
def stamp_setup(P, wslo, wshi, kern):
    if not STAMP: return
    P.ins("s_add_u32 s60, s%d, 0x%x" % (wslo, (16 + 1 * kern) << 20))
    P.ins("s_addc_u32 s61, s%d, 0" % wshi)
    P.ins("s_and_b32 s61, s61, 0xffff")
    P.ins("s_mov_b32 s62, 0x100000")
    P.ins("s_mov_b32 s63, 0x00020000")

def srd(P, d, blo, bhi, size):
    P.ins("s_mov_b32 s%d, s%d" % (d, blo))
    P.ins("s_and_b32 s%d, s%d, 0xffff" % (d + 1, bhi))
    if isinstance(size, str): P.ins("s_mov_b32 s%d, %s" % (d + 2, size))
    else: P.ins("s_mov_b32 s%d, 0x%x" % (d + 2, size))
    P.ins("s_mov_b32 s%d, 0x00020000" % (d + 3))

def gen_attn():
    P = Prog()
    P.raw(".globl %s\n.p2align 8\n.type %s,@function\n%s:" % (KNAME, KNAME, KNAME))
    P.ins("s_cmp_ge_u32 s2, 256")
    P.ins("s_cbranch_scc1 A_end")
    P.ins("s_load_dwordx4 s[4:7], s[0:1], 0")
    P.ins("s_load_dwordx4 s[8:11], s[0:1], 16")
    P.ins("s_load_dwordx2 s[12:13], s[0:1], 56")
    if STAMP: P.ins("s_memrealtime s[58:59]")
    P.ins("s_and_b32 s14, s2, 7")
    P.ins("s_lshl_b32 s14, s14, 2")
    P.ins("s_bfe_u32 s15, s2, 0x20003")
    P.ins("s_add_u32 s14, s14, s15")
    P.ins("s_lshr_b32 s15, s2, 5")
    P.ins("v_lshrrev_b32 v1, 6, v0")
    P.ins("v_and_b32 v0, 63, v0")
    P.ins("s_nop 0")
    P.ins("v_readfirstlane_b32 s16, v1")
    P.ins("s_lshl_b32 s17, s15, 5")
    P.ins("s_add_u32 s17, s17, s14")
    P.ins("s_lshl_b32 s17, s17, 17")
    P.ins("s_mul_i32 s18, s15, 122880")
    P.ins("s_lshl_b32 s19, s14, 8")
    P.ins("s_mul_i32 s41, s15, 786432")
    P.ins("s_add_u32 s41, s41, s19")
    P.ins("s_waitcnt lgkmcnt(0)")
    stamp_setup(P, 12, 13, 0)
    srd(P, 48, 4, 5, 983040)
    P.ins("s_and_b32 s43, s2, 7")
    P.ins("s_lshl_b32 s43, s43, 10")
    P.ins("s_add_u32 s52, s10, s43"); P.ins("s_addc_u32 s53, s11, 0")
    P.ins("s_and_b32 s53, s53, 0xffff")
    P.ins("s_sub_u32 s54, 5242880, s43")
    P.ins("s_mov_b32 s55, 0x00020000")
    P.ins("s_add_u32 s4, s4, s18"); P.ins("s_addc_u32 s5, s5, 0")
    srd(P, 20, 4, 5, 122880)
    P.ins("s_add_u32 s6, s6, s17"); P.ins("s_addc_u32 s7, s7, 0")
    srd(P, 24, 6, 7, 131072)
    P.ins("s_add_u32 s8, s8, s17"); P.ins("s_addc_u32 s9, s9, 0")
    srd(P, 28, 8, 9, 131072)
    P.ins("s_add_u32 s10, s10, s19"); P.ins("s_addc_u32 s11, s11, 0")
    P.ins("s_sub_u32 s42, 5242880, s19")
    srd(P, 32, 10, 11, "s42")
    P.ins("s_add_u32 s12, s12, s41"); P.ins("s_addc_u32 s13, s13, 0")
    P.ins("s_sub_u32 s42, 786432, s19")
    srd(P, 36, 12, 13, "s42")
    P.ins("s_cmp_eq_u32 s16, 3")
    P.ins("s_cbranch_scc1 A_loader")
    pre = P.text()
    comp = gen_compute()
    load = gen_loader()
    return pre + comp + load + "A_end:\n    s_endpgm\n"

AK = 1
AV = 9
VO = 13
VM = 14
VL0 = 15; VL1 = 16
VMC = 17
VT = 18
QF = 24
SB = 56
TMP = 248
XF = 24
QACC = 184
AS = 0
AO = 64
AF = 128

def Sreg(kb, r=0, n=16):
    if kb < 12: return vr(SB + 16 * kb + r, n)
    return ar(AS + 16 * (kb - 12) + r, n)

def gen_compute():
    P = Prog()
    tags = {}
    ST = Stamper(); ST.stamp(P)
    P.ins("v_and_b32 v18, 31, v0")
    P.ins("v_lshrrev_b32 v19, 5, v0")
    P.ins("v_lshrrev_b32 v20, 4, v0")
    P.ins("v_and_b32 v21, 15, v0")
    P.ins("s_lshl_b32 s40, s16, 5")
    P.ins("v_add_u32 v22, s40, v18")
    P.ins("v_lshlrev_b32 v%d, 13, v22" % VO)
    P.ins("v_lshl_add_u32 v%d, v19, 4, v%d" % (VO, VO))
    P.ins("v_lshlrev_b32 v249, 2, v20")
    P.ins("v_xor_b32 v249, v21, v249")
    P.ins("v_lshlrev_b32 v249, 4, v249")
    P.ins("v_lshl_add_u32 v248, v20, 13, v249")
    def wtile(T):
        if T is None:
            P.ins("s_lshl_b32 m0, s46, 13")
            P.ins("s_add_u32 s40, s46, s45")
            P.ins("s_cmp_ge_u32 s40, 20")
            P.ins("s_cselect_b32 s41, 20, 0")
            P.ins("s_sub_u32 s40, s40, s41")
            P.ins("s_lshl_b32 s40, s40, 18")
            P.ins("s_add_u32 s46, s46, 1")
        else:
            P.ins("s_mov_b32 m0, %d" % (T * 8192))
            P.ins("s_mov_b32 s40, %d" % (T * 32 * 8192))
        for i in range(8):
            P.vm("buffer_load_dwordx4 v248, s[32:35], s40 offen lds")
            if i < 7:
                P.ins("s_add_u32 m0, m0, 1024")
                P.ins("s_add_u32 s40, s40, 32768")
    P.ins("s_and_b32 s43, s14, 3")
    P.ins("s_add_u32 s43, s43, s15")
    for _ in range(2):
        P.ins("s_cmp_ge_u32 s43, 5")
        P.ins("s_cselect_b32 s40, 5, 0")
        P.ins("s_sub_u32 s43, s43, s40")
    P.ins("s_lshl_b32 s45, s43, 2")
    P.ins("s_lshl_b32 s40, s16, 5")
    for j in range(4):
        P.ins("v_add_u32 v249, %d, v20" % (4 * j))
        P.ins("v_xor_b32 v254, v249, v21")
        P.ins("v_add_u32 v249, s40, v249")
        P.ins("v_mul_u32_u24 v249, 1280, v249")
        P.ins("v_lshl_add_u32 v%d, v254, 4, v249" % (250 + j))
    P.ins("s_add_u32 s47, s16, 1")
    P.ins("s_mul_i32 s47, s47, 40960")
    P.ins("s_mov_b32 m0, s47")
    P.ins("s_lshl_b32 s40, s43, 8")
    ST.stamp(P)
    for c in range(5):
        for i in range(8):
            if i == 4: P.ins("s_add_u32 s41, s40, 20480")
            if 'x' not in PX:
                P.vm("buffer_load_dwordx4 v%d, s[20:23], %s offen lds" % (250 + (i & 3), "s40" if i < 4 else "s41"))
            if not (c == 4 and i == 7): P.ins("s_add_u32 m0, m0, 1024")
        if c < 4:
            P.ins("s_add_u32 s40, s40, 256")
            P.ins("s_cmp_ge_u32 s40, 1280")
            P.ins("s_cselect_b32 s41, 1280, 0")
            P.ins("s_sub_u32 s40, s40, s41")
    ST.stamp(P)
    P.ins("s_mov_b32 s46, s16")
    if 'w' not in PX: wtile(None)
    P.ins("s_add_u32 s46, s16, 3")
    P.ins("s_cmp_eq_u32 s16, 2")
    P.ins("s_cselect_b32 s46, 2, s46")
    if 'w' not in PX: wtile(None)
    ST.stamp(P)
    P.ins("v_and_b32 v249, 1, v0")
    P.ins("v_bfe_u32 v250, v0, 1, 1")
    P.ins("v_lshrrev_b32 v251, 2, v21")
    P.ins("v_and_b32 v252, 1, v20")
    P.ins("v_lshl_or_b32 v252, v252, 1, v249")
    P.ins("v_lshlrev_b32 v252, 4, v252")
    P.ins("v_lshl_add_u32 v252, v250, 3, v252")
    P.ins("v_lshrrev_b32 v253, 1, v20")
    P.ins("v_lshl_add_u32 v254, v253, 3, v251")
    P.ins("v_lshl_add_u32 v254, v254, 8, v252")
    P.ins("v_lshl_add_u32 v255, v253, 2, v251")
    P.ins("v_lshl_add_u32 v255, v255, 8, v252")
    for db in range(4):
        P.ins("v_xor_b32 v249, %d, v251" % db)
        P.ins("v_lshl_add_u32 v%d, v249, 6, v254" % (AV + db))
    P.ins("v_mov_b32 v16, v255")
    P.ins("v_mov_b32 v17, v251")
    for s in range(8):
        P.ins("v_add_u32 v249, %d, v19" % (2 * s))
        P.ins("v_xor_b32 v249, v249, v21")
        P.ins("v_lshlrev_b32 v249, 4, v249")
        P.ins("v_lshl_add_u32 v%d, v18, 8, v249" % (AK + s))
    P.ins("s_mov_b32 s44, 0x%x" % f32bits(SC))
    ST.stamp(P)
    for s in range(8): P.ins("v_add_u32 v%d, s47, v%d" % (AK + s, AK + s))
    for c in range(5):
        P.ins("s_waitcnt vmcnt(%d)" % (16 + 32 - 8 * c))
        for s in range(8):
            P.ds("ds_read_b128 %s, v%d offset:%d" % (vr(XF + 4 * (8 * c + s), 4), AK + s, c * 8192))
    P.wait_ds_all()
    for s in range(8): P.ins("v_subrev_u32 v%d, s47, v%d" % (AK + s, AK + s))
    ST.stamp(P)
    if B0E:
        P.ins("s_waitcnt vmcnt(0)")
        P.ins("s_barrier")
    P.ins("s_mul_i32 s46, s16, 5")
    P.ins("s_add_u32 s46, s46, 5")
    for n in range(5): wtile(None)
    if not B0E:
        P.ins("s_waitcnt vmcnt(40)")
        P.ins("s_barrier")
    ST.stamp(P)
    def wreads(t):
        its = []
        buf = t % 2
        if t in (8, 16):
            for db in range(4):
                its.append(Item("v_add_u32 v%d, 0x10000, v%d" % (AV + db, AV + db)))
        for ks2 in range(2):
            for db in range(4):
                for r2 in range(2):
                    its.append(Item("ds_read_b64_tr_b16 %s, v%d offset:%d" % (
                        ar(AF + 32 * buf + (ks2 * 4 + db) * 4 + 2 * r2, 2), AV + db,
                        (t % 8) * 8192 + ks2 * 4096 + r2 * 1024), 'ds', tag=('w', t, ks2, db)))
        return its
    def wmfma(t):
        its = []
        buf = t % 2
        for ks2 in range(2):
            for db in range(4):
                c = "0" if (t == 0 and ks2 == 0) else vr(QACC + 16 * db, 16)
                its.append(Item("v_mfma_f32_32x32x16_bf16 %s, %s, %s, %s" % (
                    vr(QACC + 16 * db, 16), ar(AF + 32 * buf + (ks2 * 4 + db) * 4, 4),
                    vr(XF + 4 * (2 * t + ks2), 4), c), need=[('w', t, ks2, db)]))
        return its
    def qbar():
        P.wait_vm_all()
        P.wait_ds_all()
        P.ins("s_barrier")
    emit(P, wreads(0), tags)
    for t in range(20):
        mf = wmfma(t)
        rd = wreads(t + 1) if t < 19 else []
        bnd = (t + 1) in (5, 20)
        g0 = 3 if bnd else 0
        seq = []
        per = (len(rd) + 3) // 4
        for n, m in enumerate(mf):
            seq.append(m)
            if bnd and n == g0 - 1: seq.append(qbar)
            if g0 <= n < g0 + 4: seq += rd[per * (n - g0):per * (n - g0 + 1)]
        emit(P, seq, tags)
    for db in range(4):
        P.ins("v_xor_b32 v249, %d, v17" % db)
        P.ins("v_lshl_add_u32 v%d, v249, 6, v16" % (AV + db))
        P.ins("v_add_u32 v%d, 0x%x, v%d" % (AV + db, 131072, AV + db))
    P.ins("v_mov_b32 v%d, 0xff800000" % VM)
    for s in range(8):
        for p in range(4):
            a = QACC + 16 * (s >> 1) + 8 * (s & 1) + 2 * p
            P.ins("v_cvt_pk_bf16_f32 v%d, v%d, v%d" % (QF + 4 * s + p, a, a + 1))
    ST.stamp(P)
    VMCE = 248; VLE = 250
    VMCL = 24; VLL = 26
    VM2 = 15; VC = 16
    AO2 = 192
    P.ins("s_mov_b32 s45, s44")
    P.ins("v_mov_b32 v%d, 0xff800000" % VM2)
    def kreads(kb):
        its = []
        for s in range(8):
            its.append(Item("ds_read_b128 %s, v%d offset:%d" % (ar(AF + 32 * (kb % 2) + 4 * s, 4), AK + s, (kb % 8) * 8192),
                            'ds', tag=('k', kb, s)))
        return its
    def smfma(kb):
        its = []
        for s in range(8):
            c = "0" if s == 0 else Sreg(kb)
            its.append(Item("v_mfma_f32_32x32x16_bf16 %s, %s, %s, %s" % (
                Sreg(kb), ar(AF + 32 * (kb % 2) + 4 * s, 4), vr(QF + 4 * s, 4), c), need=[('k', kb, s)]))
        return its
    def maxops(kb):
        its = []
        M = VM if kb < 8 else VM2
        for p in range(8):
            if kb < 12:
                a = SB + 16 * kb + 2 * p
                its.append(Item("v_max3_f32 v%d, v%d, v%d, v%d" % (M, a, a + 1, M)))
            else:
                a = AS + 16 * (kb - 12) + 2 * p
                t0 = 252 + 2 * (p % 2)
                its.append(Item("v_accvgpr_read_b32 v%d, a%d" % (t0, a)))
                its.append(Item("v_accvgpr_read_b32 v%d, a%d" % (t0 + 1, a + 1)))
                its.append(Item("v_max3_f32 v%d, v%d, v%d, v%d" % (M, t0, t0 + 1, M)))
        return its
    def xmax(M):
        return [Item("v_mov_b32 v%d, v%d" % (VT, M)), Item("v_mov_b32 v%d, v%d" % (VT + 1, M)),
                Item("v_permlane32_swap_b32 v%d, v%d" % (VT, VT + 1)),
                Item("v_max_f32 v%d, v%d, v%d" % (M, VT, VT + 1))]
    def barrier():
        P.wait_ds_all()
        P.ins("s_barrier")
    def Preg(kk):
        kb = kk >> 1; u = kk & 1
        if kb < 12: return SB + 16 * kb + 4 * u
        i2 = 2 * (kb - 12) + u
        return SB + 16 * i2 + 8
    def eops(kb):
        its = []
        MC, L = (VMCE, VLE) if kb < 8 else (VMCL, VLL)
        if kb < 12:
            regs = [SB + 16 * kb + r for r in range(16)]
        else:
            regs = [SB + 16 * (2 * (kb - 12) + (r >> 3)) + 8 + (r & 7) for r in range(16)]
        def dst(p):
            if kb < 12: return SB + 16 * kb + p
            return SB + 16 * (2 * (kb - 12) + (p >> 2)) + 8 + (p & 3)
        for p in range(11):
            if p < 8:
                a = regs[2 * p]
                if kb >= 12:
                    its.append(Item("v_accvgpr_read_b32 v%d, a%d" % (a, AS + 16 * (kb - 12) + 2 * p)))
                    its.append(Item("v_accvgpr_read_b32 v%d, a%d" % (a + 1, AS + 16 * (kb - 12) + 2 * p + 1)))
                its.append(Item("v_fma_f32 v%d, v%d, s44, -v%d" % (a, a, MC)))
                its.append(Item("v_fma_f32 v%d, v%d, s44, -v%d" % (a + 1, a + 1, MC)))
            if 0 <= p - 1 < 8:
                a = regs[2 * (p - 1)]
                its.append(Item("v_exp_f32 v%d, v%d" % (a, a)))
                its.append(Item("v_exp_f32 v%d, v%d" % (a + 1, a + 1)))
            if 0 <= p - 2 < 8:
                a = regs[2 * (p - 2)]
                its.append(Item("v_add_f32 v%d, v%d, v%d" % (L, L, a)))
                its.append(Item("v_add_f32 v%d, v%d, v%d" % (L + 1, L + 1, a + 1)))
            if 0 <= p - 3 < 8:
                q = p - 3
                its.append(Item("v_cvt_pk_bf16_f32 v%d, v%d, v%d" % (dst(q), regs[2 * q], regs[2 * q + 1])))
        return its
    barrier()
    emit(P, kreads(0), tags)
    for kb in range(16):
        mf = smfma(kb)
        seq = []
        nxt = kb + 1
        pre_items = []
        if nxt < 16:
            if nxt in (2, 6, 10, 14):
                pre_items.append(barrier)
            if nxt == 8:
                for s in range(8):
                    pre_items.append(Item("v_add_u32 v%d, 0x10000, v%d" % (AK + s, AK + s)))
            rd = kreads(nxt)
        else:
            rd = []
        fill = maxops(kb - 1) if kb >= 1 else []
        if kb == 8:
            fill += xmax(VM) + [Item("v_mul_f32 v%d, s44, v%d" % (VMCE, VM)), Item("v_mul_f32 v%d, s44, v%d" % (VMCE + 1, VM)),
                                Item("v_mov_b32 v%d, 0" % VLE), Item("v_mov_b32 v%d, 0" % (VLE + 1))]
        if kb >= 9: fill += eops(kb - 9)
        seq += pre_items
        for n, m in enumerate(mf):
            seq.append(m)
            if n < 4: seq += rd[2 * n:2 * n + 2]
            if n >= 2:
                k0 = (len(fill) * (n - 2)) // 6; k1 = (len(fill) * (n - 1)) // 6
                seq += fill[k0:k1]
        emit(P, seq, tags)
    e7 = eops(7)
    emit(P, e7[:12] + maxops(15) + e7[12:] + xmax(VM2), tags)
    P.ins("v_max_f32 v%d, v%d, v%d" % (VM2, VM, VM2))
    P.ins("v_mul_f32 v%d, s44, v%d" % (VMCL, VM2))
    P.ins("v_mul_f32 v%d, s44, v%d" % (VMCL + 1, VM2))
    P.ins("v_sub_f32 v%d, v%d, v%d" % (VC, VMCE, VMCL))
    P.ins("v_exp_f32 v%d, v%d" % (VC, VC))
    P.ins("v_mov_b32 v%d, 0" % VLL)
    P.ins("v_mov_b32 v%d, 0" % (VLL + 1))
    ST.stamp(P)
    def vbase(j): return (j - 2) * 16384 if j >= 2 else 131072 + j * 16384
    def vreads(kk):
        its = []
        for db in range(4):
            for r2 in range(2):
                its.append(Item("ds_read_b64_tr_b16 %s, v%d offset:%d" % (
                    ar(AF + 16 * (kk % 4) + 4 * db + 2 * r2, 2), AV + db, (kk & 3) * 4096 + r2 * 2048),
                    'ds', tag=('v', kk, db)))
        return its
    def pmfma(kk):
        its = []
        A = AO if kk < 16 else AO2
        for db in range(4):
            c = "0" if kk in (0, 16) else ar(A + 16 * db, 16)
            its.append(Item("v_mfma_f32_32x32x16_bf16 %s, %s, %s, %s" % (
                ar(A + 16 * db, 16), ar(AF + 16 * (kk % 4) + 4 * db, 4), vr(Preg(kk), 4), c), need=[('v', kk, db)]))
        return its
    def pbar(j):
        def f():
            if j not in (1, 3): P.ins("s_barrier")
            if j > 0:
                d = vbase(j) - vbase(j - 1)
                for db in range(4):
                    P.ins("v_add_u32 v%d, 0x%x, v%d" % (AV + db, d & 0xffffffff, AV + db))
        return f
    ework = []
    for kb in range(8, 16): ework += [(kb, it) for it in eops(kb)]
    emit(P, [pbar(0)] + vreads(0) + vreads(1), tags)
    epos = 0
    acc = 0.0
    blk_len = len(eops(8))
    for kk in range(32):
        mf = pmfma(kk)
        fill = []
        acc += 0.42 * blk_len
        tgt = int(acc)
        must = (kk + 1) >> 1
        while epos < len(ework) and (epos < tgt or ework[epos][0] <= must):
            fill.append(ework[epos][1]); epos += 1
        pre_items = []
        rd = []
        n2 = kk + 2
        if n2 < 32:
            if n2 % 4 == 0: pre_items.append(pbar(n2 // 4))
            rd = vreads(n2)
        seq = list(pre_items)
        fl = rd + fill
        seq += interleave(mf, fl)
        emit(P, seq, tags)
        if kk % 8 == 7: ST.stamp(P)
    assert epos == len(ework)
    P.ins("v_add_f32 v%d, v%d, v%d" % (VLE, VLE, VLE + 1))
    P.ins("v_add_f32 v%d, v%d, v%d" % (VLL, VLL, VLL + 1))
    P.ins("v_fma_f32 v%d, v%d, v%d, v%d" % (VLE, VLE, VC, VLL))
    P.ins("v_mov_b32 v%d, v%d" % (VT, VLE))
    P.ins("v_mov_b32 v%d, v%d" % (VT + 1, VLE))
    P.ins("v_permlane32_swap_b32 v%d, v%d" % (VT, VT + 1))
    P.ins("v_add_f32 v%d, v%d, v%d" % (VLE, VT, VT + 1))
    P.ins("v_rcp_f32 v%d, v%d" % (VLL, VLE))
    P.ins("v_mul_f32 v%d, v%d, v%d" % (VC, VC, VLL))
    P.ins("v_mov_b32 v%d, v%d" % (VLL + 1, VLL))
    P.ins("v_mov_b32 v%d, v%d" % (VLE, VC))
    P.ins("v_mov_b32 v%d, v%d" % (VLE + 1, VC))
    P.ins("s_lshl_b32 s41, s16, 13")
    P.ins("s_add_u32 s41, s41, 98304")
    P.ins("v_lshrrev_b32 v%d, 5, v0" % VT)
    P.ins("v_and_b32 v%d, 15, v0" % (VT + 1))
    P.ins("v_xor_b32 v%d, v%d, v%d" % (VT, VT, VT + 1))
    P.ins("v_and_b32 v%d, 31, v0" % (VT + 1))
    P.ins("v_lshlrev_b32 v%d, 8, v%d" % (VT + 1, VT + 1))
    P.ins("v_add_u32 v%d, s41, v%d" % (VT + 1, VT + 1))
    for db in range(4):
        base = SB + 32 * db
        for r in range(16):
            P.ins("v_accvgpr_read_b32 v%d, a%d" % (base + r, AO + 16 * db + r))
        for r in range(16):
            P.ins("v_accvgpr_read_b32 v%d, a%d" % (base + 16 + r, AO2 + 16 * db + r))
        for p in range(8):
            P.ins("v_pk_mul_f32 %s, %s, %s" % (vr(base + 2 * p, 2), vr(base + 2 * p, 2), vr(VLE, 2)))
        for p in range(8):
            P.ins("v_pk_fma_f32 %s, %s, %s, %s" % (vr(base + 2 * p, 2), vr(base + 16 + 2 * p, 2), vr(VLL, 2), vr(base + 2 * p, 2)))
        ob = SB + 128 + 8 * db
        for p in range(8):
            P.ins("v_cvt_pk_bf16_f32 v%d, v%d, v%d" % (ob + p, base + 2 * p, base + 2 * p + 1))
        for u in range(2):
            P.ins("v_xor_b32 v%d, %d, v%d" % (VT + 2 + u, 4 * db + 2 * u, VT))
            P.ins("v_lshl_add_u32 v%d, v%d, 4, v%d" % (VT + 2 + u, VT + 2 + u, VT + 1))
            P.ds("ds_write_b128 v%d, %s" % (VT + 2 + u, vr(ob + 4 * u, 4)))
    P.ins("v_lshrrev_b32 v%d, 4, v0" % VT)
    P.ins("v_and_b32 v%d, 15, v0" % (VT + 1))
    P.ins("s_lshl_b32 s40, s16, 5")
    P.ins("v_add_u32 v%d, s40, v%d" % (VO, VT))
    P.ins("v_lshlrev_b32 v%d, 13, v%d" % (VO, VO))
    P.ins("v_lshl_add_u32 v%d, v%d, 4, v%d" % (VO, VT + 1, VO))
    for j in range(4):
        P.ins("v_add_u32 v%d, %d, v%d" % (VT + 2, 4 * j, VT))
        P.ins("v_xor_b32 v%d, v%d, v%d" % (VT + 3, VT + 2, VT + 1))
        P.ins("v_lshlrev_b32 v%d, 4, v%d" % (VT + 3, VT + 3))
        P.ins("v_lshl_add_u32 v%d, v%d, 8, v%d" % (AK + j, VT + 2, VT + 3))
        P.ins("v_add_u32 v%d, s41, v%d" % (AK + j, AK + j))
    P.wait_ds_all()
    rt = []
    for i in range(8):
        rt.append(P.ds("ds_read_b128 %s, v%d offset:%d" % (vr(SB + 4 * i, 4), AK + (i & 3), (i >> 2) * 4096)))
    for i in range(8):
        P.wait_ds(rt[i])
        P.ins("s_mov_b32 s40, %d" % (i * 32768))
        P.vm("buffer_store_dwordx4 %s, v%d, s[36:39], s40 offen%s" % (vr(SB + 4 * i, 4), VO, " sc1" if FUSED else ""))
    ST.stamp(P)
    if STAMP or FUSED: P.wait_vm_all()
    ST.stamp(P)
    ST.dump(P, 200, 0)
    if FUSED: P.ins("s_branch O_start")
    else: P.ins("s_endpgm")
    return P.text()

def gen_loader():
    P = Prog()
    P.label("A_loader")
    tags = {}
    ST = Stamper(); ST.stamp(P)
    P.ins("v_lshrrev_b32 v1, 4, v0")
    P.ins("v_and_b32 v2, 15, v0")
    P.ins("v_lshlrev_b32 v8, 4, v0")
    def vstage(bf, i):
        n = bf * 16 + i
        if n < 58: return vr(24 + 4 * n, 4)
        return ar(4 * (n - 58), 4)
    bufof = {}
    def toreg(n, bf):
        bufof[n] = bf
        sr = "s[24:27]" if n < 8 else "s[28:31]"
        for g in range(4):
            P.wait_vm(P.vm_issued - (LIM - 4))
            P.ins("s_mov_b32 s40, %d" % ((n % 8) * 16384 + g * 4096))
            for i in range(4):
                tags[n] = P.vm("buffer_load_dwordx4 %s, v8, %s, s40 offen offset:%d nt" % (vstage(bf, 4 * g + i), sr, i * 1024))
    for i in range(4):
        P.ins("v_add_u32 v3, %d, v1" % (4 * i))
        P.ins("v_xor_b32 v3, v3, v2")
        P.ins("v_lshlrev_b32 v3, 4, v3")
        P.ins("v_lshl_add_u32 v%d, v1, 8, v3" % (4 + i))
        P.ins("v_add_u32 v%d, 0x10000, v%d" % (12 + i, 4 + i))
    P.ins("v_lshlrev_b32 v3, 2, v1")
    P.ins("v_xor_b32 v3, v3, v2")
    P.ins("v_lshlrev_b32 v3, 4, v3")
    P.ins("v_lshl_add_u32 v9, v1, 8, v3")
    P.ins("v_add_u32 v10, 0x20000, v9")
    def dump(n):
        P.wait_vm(tags[n])
        bf = bufof[n]
        for i in range(16):
            if n < 8:
                a = (4 if n < 4 else 12) + (i & 3)
                P.ds("ds_write_b128 v%d, %s offset:%d" % (a, vstage(bf, i), (n % 4) * 16384 + i * 1024))
            elif n < 10:
                P.ds("ds_write_b128 v10, %s offset:%d" % (vstage(bf, i), (n - 8) * 16384 + i * 1024))
            else:
                P.ds("ds_write_b128 v9, %s offset:%d" % (vstage(bf, i), (n - 10) * 16384 + i * 1024))
        P.wait_ds_all()
    def vdma(j):
        for g in range(4):
            P.wait_vm(P.vm_issued - (LIM2 - 4))
            P.ins("s_mov_b32 m0, %d" % ((j - 2) * 16384 + g * 4096))
            P.ins("s_mov_b32 s40, %d" % (j * 16384 + g * 4096))
            for i in range(4):
                tags[8 + j] = P.vm("buffer_load_dwordx4 v9, s[28:31], s40 offen offset:%d nt lds" % (i * 1024))
    def bar():
        P.ins("s_barrier"); ST.stamp(P)
    ST.stamp(P)
    global LIM
    sv = LIM; LIM = PLIM
    for n in range(PRE): toreg(n, n)
    LIM = sv
    bar()
    for n in range(PRE, PRE + 3): toreg(n, n)
    bar()
    for n in range(PRE + 3, 7): toreg(n, n)
    bar()
    dump(0); bar()
    dump(1); dump(2); bar()
    toreg(7, 0); dump(3); toreg(8, 1); dump(4); bar()
    toreg(9, 2); dump(5); toreg(10, 3); dump(6); bar()
    toreg(11, 4); dump(7); bar()
    toreg(12, 5); dump(8); toreg(13, 6); dump(9); bar()
    vdma(6); dump(10); vdma(7); dump(11); bar()
    dump(12); bar()
    dump(13); bar()
    for j in range(6, 8):
        P.wait_vm(tags[8 + j]); bar()
    ST.dump(P, 16, 0)
    if FUSED: P.ins("s_branch O_start")
    else: P.ins("s_endpgm")
    return P.text()

def gen_oproj():
    P = Prog()
    tags = {}
    ST = Stamper()
    if FUSED:
        P.label("O_start")
        P.ins("s_load_dwordx4 s[4:7], s[0:1], 32")
        P.ins("s_load_dwordx4 s[8:11], s[0:1], 48")
        if STAMP: P.ins("s_memrealtime s[58:59]")
        P.ins("s_waitcnt vmcnt(0) lgkmcnt(0)")
        P.ins("s_barrier")
        srd(P, 12, 8, 9, 256)
        P.ins("s_mov_b32 s8, s10"); P.ins("s_mov_b32 s9, s11")
        P.ins("s_cmp_eq_u32 s16, 0")
        P.ins("s_cbranch_scc0 O_nosig")
        P.ins("s_lshr_b32 s17, s2, 5")
        P.ins("s_lshl_b32 s17, s17, 5")
        P.ins("v_mov_b32 v1, 1")
        P.ins("v_mov_b32 v2, s17")
        P.ins("v_cmp_eq_u32 vcc, 0, v0")
        P.ins("s_and_saveexec_b64 s[18:19], vcc")
        P.ins("buffer_atomic_add v1, v2, s[12:15], 0 offen sc1")
        P.ins("s_mov_b64 exec, s[18:19]")
        P.label("O_nosig")
        P.ins("s_cmp_ge_u32 s2, 240")
        P.ins("s_cbranch_scc1 O_end")
        P.ins("s_mov_b32 s50, s16")
        P.ins("s_mov_b32 s[52:53], s[12:13]".replace("s_mov_b32", "s_mov_b64"))
        P.ins("s_mov_b64 s[54:55], s[14:15]")
    else:
        P.raw(".globl oproj_kernel\n.p2align 8\n.type oproj_kernel,@function\noproj_kernel:")
        P.ins("s_cmp_ge_u32 s2, 240")
        P.ins("s_cbranch_scc1 O_end")
        P.ins("s_load_dwordx4 s[4:7], s[0:1], 32")
        P.ins("s_load_dwordx2 s[8:9], s[0:1], 56")
        if STAMP: P.ins("s_memrealtime s[58:59]")
    P.ins("s_and_b32 s14, s2, 7")
    P.ins("s_lshr_b32 s15, s2, 3")
    P.ins("s_mul_i32 s16, s15, 52")
    P.ins("s_lshr_b32 s16, s16, 8")
    P.ins("s_mul_i32 s17, s16, 5")
    P.ins("s_sub_u32 s17, s15, s17")
    P.ins("s_mul_i32 s48, s16, 3")
    P.ins("s_mul_i32 s49, s17, 5")
    P.ins("s_add_u32 s48, s48, s49")
    P.ins("s_lshr_b32 s18, s14, 1")
    P.ins("s_mul_i32 s18, s18, 192")
    P.ins("s_lshl_b32 s19, s16, 5")
    P.ins("s_add_u32 s18, s18, s19")
    P.ins("s_and_b32 s19, s14, 1")
    P.ins("s_mul_i32 s19, s19, 320")
    P.ins("s_lshl_b32 s17, s17, 6")
    P.ins("s_add_u32 s19, s19, s17")
    if FUSED:
        P.ins("s_mul_i32 s51, s18, 683")
        P.ins("s_lshr_b32 s51, s51, 16")
        P.ins("s_lshl_b32 s51, s51, 5")
        P.ins("s_mov_b32 s16, s50")
    else:
        P.ins("v_lshrrev_b32 v1, 6, v0")
        P.ins("v_and_b32 v0, 63, v0")
        P.ins("s_nop 0")
        P.ins("v_readfirstlane_b32 s16, v1")
    P.ins("s_lshl_b32 s40, s18, 13")
    P.ins("s_lshl_b32 s45, s16, 11")
    P.ins("s_add_u32 s40, s40, s45")
    P.ins("s_mul_i32 s41, s18, 1280")
    P.ins("s_lshl_b32 s42, s19, 1")
    P.ins("s_add_u32 s41, s41, s42")
    P.ins("s_mul_i32 s43, s16, %d" % (1024 * 1280))
    P.ins("s_add_u32 s43, s43, s42")
    P.ins("s_mul_i32 s46, s16, 40960")
    P.ins("v_and_b32 v18, 31, v0")
    P.ins("v_lshrrev_b32 v19, 5, v0")
    P.ins("v_lshrrev_b32 v20, 4, v0")
    P.ins("v_and_b32 v21, 15, v0")
    P.ins("v_lshrrev_b32 v3, 3, v0")
    P.ins("v_bfe_u32 v4, v0, 4, 1")
    P.ins("v_lshlrev_b32 v4, 2, v4")
    P.ins("v_and_b32 v5, 7, v0")
    P.ins("v_xor_b32 v4, v4, v5")
    P.ins("v_lshlrev_b32 v4, 4, v4")
    P.ins("v_mul_u32_u24 v6, 1280, v3")
    P.ins("v_add_u32 v24, v6, v4")
    for i in range(1, 4):
        P.ins("v_add_u32 v%d, %d, v24" % (24 + i, i * (10240 - 1024)))
    for j in range(4):
        P.ins("v_add_u32 v4, %d, v20" % (4 * (j & 1)))
        P.ins("v_xor_b32 v4, v4, v5")
        P.ins("v_lshlrev_b32 v4, 4, v4")
        P.ins("v_lshl_add_u32 v4, v3, 13, v4")
        P.ins("v_add_u32 v%d, %d, v4" % (28 + j, j * (65536 - 1024)))
    P.ins("s_waitcnt lgkmcnt(0)")
    stamp_setup(P, 8, 9, 1)
    ST.stamp(P)
    P.ins("s_add_u32 s4, s4, s43"); P.ins("s_addc_u32 s5, s5, 0")
    P.ins("s_sub_u32 s44, 5242880, s43")
    srd(P, 20, 4, 5, "s44")
    P.ins("s_add_u32 s8, s8, s40"); P.ins("s_addc_u32 s9, s9, 0")
    P.ins("s_sub_u32 s44, %d, s45" % (32 * 8192))
    srd(P, 28, 8, 9, "s44")
    NS = 3
    SL = 12288
    def dma(t, part=3):
        sl = (t % NS) * SL
        P.ins("s_add_u32 s47, s48, %d" % t)
        P.ins("s_and_b32 s47, s47, 15")
        if part & 1:
            P.ins("s_mul_i32 s49, s47, 81920")
            for sub in range(2):
                P.ins("s_add_u32 m0, s46, %d" % (sl + 4096 * sub))
                if sub: P.ins("s_add_u32 s49, s49, 40960")
                for i in range(4):
                    tags[('T', t)] = P.vm("buffer_load_dwordx4 v%d, s[20:23], s49 offen offset:%d lds" % (24 + i, i * 1024))
        if part & 2:
            P.ins("s_lshl_b32 s47, s47, 7")
            P.ins("s_add_u32 m0, s46, %d" % (sl + 8192))
            for j in range(4):
                tags[('T', t)] = P.vm("buffer_load_dwordx4 v%d, s[28:31], s47 offen offset:%d lds" % (28 + j, j * 1024))
    ST.stamp(P)
    if FUSED:
        for t in range(NS): dma(t, 1)
        ST.stamp(P)
        P.ins("s_cmp_eq_u32 s16, 0")
        P.ins("s_cbranch_scc0 O_nopoll")
        P.ins("v_mov_b32 v2, s51")
        P.ins("s_mov_b32 s56, 0")
        P.label("O_poll")
        P.ins("buffer_load_dword v1, v2, s[52:55], 0 offen sc1")
        P.ins("s_waitcnt vmcnt(0)")
        P.ins("v_readfirstlane_b32 s57, v1")
        P.ins("s_add_u32 s56, s56, 1")
        P.ins("s_cmp_ge_u32 s56, 0x40000")
        P.ins("s_cbranch_scc1 O_pdone")
        P.ins("s_cmp_ge_u32 s57, 32")
        P.ins("s_cbranch_scc1 O_pdone")
        P.ins("s_sleep 4")
        P.ins("s_branch O_poll")
        P.label("O_pdone")
        P.ins("buffer_inv sc1")
        P.ins("s_waitcnt vmcnt(0)")
        P.label("O_nopoll")
        P.ins("s_barrier")
        ST.stamp(P)
        for t in range(NS): dma(t, 2)
    else:
        for t in range(NS): dma(t)
    P.ins("s_add_u32 s6, s6, s41"); P.ins("s_addc_u32 s7, s7, 0")
    P.ins("s_sub_u32 s44, 983040, s41")
    srd(P, 24, 6, 7, "s44")
    P.ins("v_and_b32 v6, 1, v0")
    P.ins("v_bfe_u32 v7, v0, 1, 1")
    P.ins("v_lshrrev_b32 v8, 2, v21")
    P.ins("v_and_b32 v9, 1, v20")
    P.ins("v_lshl_or_b32 v9, v9, 1, v6")
    P.ins("v_lshlrev_b32 v9, 4, v9")
    P.ins("v_lshl_add_u32 v9, v7, 3, v9")
    P.ins("v_lshrrev_b32 v10, 1, v20")
    P.ins("v_lshl_add_u32 v10, v10, 3, v8")
    P.ins("v_lshl_add_u32 v9, v10, 7, v9")
    P.ins("v_add_u32 v9, s46, v9")
    P.ins("v_bfe_u32 v10, v0, 3, 1")
    for nb in range(2):
        P.ins("v_xor_b32 v11, %d, v10" % nb)
        P.ins("v_lshl_add_u32 v%d, v11, 6, v9" % (12 + nb))
    P.ins("v_bfe_u32 v6, v0, 1, 3")
    P.ins("v_lshlrev_b32 v7, 7, v18")
    P.ins("v_add_u32 v7, s46, v7")
    for ks in range(4):
        P.ins("v_add_u32 v8, %d, v19" % (2 * ks))
        P.ins("v_xor_b32 v8, v8, v6")
        P.ins("v_lshl_add_u32 v%d, v8, 4, v7" % (14 + ks))
    ACC = 32
    FR = 64
    FB = 96
    ST.stamp(P)
    for t in range(16):
        sl = (t % NS) * SL
        P.wait_vm(tags[('T', t)])
        if t == 0: ST.stamp(P)
        seq = []
        for ks in range(4):
            seq.append(Item("ds_read_b128 %s, v%d offset:%d" % (vr(FB + 4 * ks, 4), 14 + ks, sl + 8192), 'ds'))
            for nb in range(2):
                for r2 in range(2):
                    seq.append(Item("ds_read_b64_tr_b16 %s, v%d offset:%d" % (
                        vr(FR + (ks * 2 + nb) * 4 + 2 * r2, 2), 12 + nb,
                        sl + (ks >> 1) * 4096 + (ks & 1) * 2048 + r2 * 512), 'ds', tag=('r', t, ks, nb)))
        n = 0
        for ks in range(4):
            for nb in range(2):
                c = "0" if (t == 0 and ks == 0) else vr(ACC + 16 * nb, 16)
                seq.append(Item("v_mfma_f32_32x32x16_bf16 %s, %s, %s, %s" % (
                    vr(ACC + 16 * nb, 16), vr(FR + (ks * 2 + nb) * 4, 4), vr(FB + 4 * ks, 4), c),
                    need=[('r', t, ks, nb)]))
                n += 1
                if n == 4 and t + NS < 16:
                    def f(t=t):
                        P.wait_ds_all()
                        dma(t + NS)
                    seq.append(f)
        emit(P, seq, tags)
        if t % 2 == 1: ST.stamp(P)
    P.ins("v_lshlrev_b32 v4, 4, v0")
    P.ins("v_add_u32 v5, s46, v4")
    for j in range(8):
        P.ds("ds_write_b128 v5, %s offset:%d" % (vr(ACC + 4 * j, 4), j * 1024))
    P.wait_ds_all()
    P.ins("s_barrier")
    P.ins("s_lshl_b32 s47, s16, 11")
    P.ins("v_add_u32 v5, s47, v4")
    P.ins("v_add_u32 v6, 81920, v5")
    for w in range(4):
        for q in range(2):
            a = "v5" if w < 2 else "v6"
            P.ds("ds_read_b128 %s, %s offset:%d" % (vr(64 + 8 * w + 4 * q, 4), a, (w % 2) * 40960 + q * 1024))
    P.wait_ds_all()
    for r in range(8):
        P.ins("v_add_f32 v%d, v%d, v%d" % (64 + r, 64 + r, 72 + r))
        P.ins("v_add_f32 v%d, v%d, v%d" % (80 + r, 80 + r, 88 + r))
    for r in range(8):
        P.ins("v_add_f32 v%d, v%d, v%d" % (64 + r, 64 + r, 80 + r))
    for p in range(4):
        P.ins("v_cvt_pk_bf16_f32 v%d, v%d, v%d" % (96 + p, 64 + 2 * p, 64 + 2 * p + 1))
    P.ins("v_mul_u32_u24 v7, 1280, v18")
    P.ins("v_lshl_add_u32 v7, v19, 4, v7")
    P.ins("s_lshl_b32 s47, s16, 5")
    P.ins("v_add_u32 v7, s47, v7")
    P.vm("buffer_store_dwordx4 v[96:99], v7, s[24:27], 0 offen")
    ST.stamp(P)
    if STAMP: P.wait_vm_all()
    ST.stamp(P)
    ST.dump(P, 100, 1)
    P.label("O_end")
    P.ins("s_endpgm")
    return P.text()

HEAD = """; Kernarg layout for this problem (64 bytes, ptrs only, base s[0:1]):
;   0 x, 8 k_cache, 16 v_cache, 24 wq, 32 wo, 40 out, 48 debug, 56 ws
""" + ("""; @launch grid=(256,1,1) block=(256,1,1) lds=163840
""" if FUSED else """; @launch kernel=attn_kernel grid=(256,1,1) block=(256,1,1) lds=163840
; @launch kernel=oproj_kernel grid=(240,1,1) block=(256,1,1) lds=163840
""") + """.amdgcn_target "amdgcn-amd-amdhsa--gfx950"
.text
"""
def kd(name, vg, acc):
    return """.amdhsa_kernel %s
  .amdhsa_next_free_vgpr %d
  .amdhsa_next_free_sgpr 102
  .amdhsa_accum_offset %d
  .amdhsa_group_segment_fixed_size 0
  .amdhsa_kernarg_size 64
  .amdhsa_user_sgpr_count 2
  .amdhsa_user_sgpr_kernarg_segment_ptr 1
  .amdhsa_system_sgpr_workgroup_id_x 1
.end_amdhsa_kernel
""" % (name, vg, acc)

if __name__ == "__main__":
    a, n1 = pad_hazards(gen_attn())
    o, n2 = pad_hazards(gen_oproj())
    print("pads", n1, n2, file=sys.stderr)
    s = HEAD + a + "\n" + o + '\n.section .rodata,"a"\n.p2align 6\n' + kd(KNAME, 512, 256) + ("" if FUSED else ".p2align 6\n" + kd("oproj_kernel", 128, 128))
    open(sys.argv[1], "w").write(s)
```

```python
import sys
from asmlib import *

NVREG = 6
WBASE = 131072
SC = 0.08838834764831845 * 1.4426950408889634
import struct
def f32bits(x): return struct.unpack('<I', struct.pack('<f', x))[0]

def vr(b, n=1): return "v%d" % b if n == 1 else "v[%d:%d]" % (b, b + n - 1)
def ar(b, n=1): return "a%d" % b if n == 1 else "a[%d:%d]" % (b, b + n - 1)

class Item:
    def __init__(self, t, k='x', tag=None, need=(), needvm=()):
        self.t = t; self.k = k; self.tag = tag; self.need = need; self.needvm = needvm

def emit(P, items, tags):
    for it in items:
        if callable(it):
            it(); continue
        for n in it.need: P.wait_ds(tags[n])
        for n in it.needvm: P.wait_vm(tags[n])
        if it.k == 'ds':
            tg = P.ds(it.t)
        elif it.k == 'vm':
            tg = P.vm(it.t)
        else:
            P.ins(it.t); tg = None
        if it.tag is not None: tags[it.tag] = tg

import os
STAMP = int(os.environ.get("STAMP", "0"))
LIM = int(os.environ.get("LIM", "64"))
PX = ""
B0E = int(os.environ.get("B0E", "0"))
WTOUCH = int(os.environ.get("WTOUCH", "1"))
FUSED = int(os.environ.get("FUSED", "1"))
KNAME = "standalone__gqa_block_cached__near_ridge_kernel" if FUSED else "attn_kernel"
PRE = int(os.environ.get("PRE", "0"))
PLIM = int(os.environ.get("PLIM", "16"))
LIM2 = int(os.environ.get("LIM2", "64"))
class Stamper:
    def __init__(self): self.n = 0
    def stamp(self, P):
        if not STAMP: return
        P.wait_ds_all()
        P.ins("s_memtime s[%d:%d]" % (64 + 2 * self.n, 65 + 2 * self.n))
        P.ins("s_waitcnt lgkmcnt(0)")
        self.n += 1
    def dump(self, P, vtmp, kern):
        if not STAMP: return
        P.ins("v_mov_b32 v%d, 0" % vtmp)
        for i in range(self.n):
            P.ins("v_writelane_b32 v%d, s%d, %d" % (vtmp, 64 + 2 * i, i))
        P.ins("v_writelane_b32 v%d, s58, 30" % vtmp)
        P.ins("s_memrealtime s[56:57]")
        P.ins("s_waitcnt lgkmcnt(0)")
        P.ins("v_writelane_b32 v%d, s56, 31" % vtmp)
        P.ins("s_lshl_b32 s56, s2, 2")
        P.ins("s_add_u32 s56, s56, s16")
        P.ins("s_lshl_b32 s56, s56, 7")
        P.ins("v_lshlrev_b32 v%d, 2, v0" % (vtmp + 1))
        P.ins("v_cmp_gt_u32 vcc, 32, v0")
        P.ins("s_and_saveexec_b64 s[54:55], vcc")
        P.ins("buffer_store_dword v%d, v%d, s[60:63], s56 offen offset:0" % (vtmp, vtmp + 1))
        P.ins("s_mov_b64 exec, s[54:55]")
def stamp_setup(P, wslo, wshi, kern):
    if not STAMP: return
    P.ins("s_add_u32 s60, s%d, 0x%x" % (wslo, (16 + 1 * kern) << 20))
    P.ins("s_addc_u32 s61, s%d, 0" % wshi)
    P.ins("s_and_b32 s61, s61, 0xffff")
    P.ins("s_mov_b32 s62, 0x100000")
    P.ins("s_mov_b32 s63, 0x00020000")

def srd(P, d, blo, bhi, size):
    P.ins("s_mov_b32 s%d, s%d" % (d, blo))
    P.ins("s_and_b32 s%d, s%d, 0xffff" % (d + 1, bhi))
    if isinstance(size, str): P.ins("s_mov_b32 s%d, %s" % (d + 2, size))
    else: P.ins("s_mov_b32 s%d, 0x%x" % (d + 2, size))
    P.ins("s_mov_b32 s%d, 0x00020000" % (d + 3))

def gen_attn():
    P = Prog()
    P.raw(".globl %s\n.p2align 8\n.type %s,@function\n%s:" % (KNAME, KNAME, KNAME))
    P.ins("s_cmp_ge_u32 s2, 256")
    P.ins("s_cbranch_scc1 A_end")
    P.ins("s_load_dwordx4 s[4:7], s[0:1], 0")
    P.ins("s_load_dwordx4 s[8:11], s[0:1], 16")
    P.ins("s_load_dwordx2 s[12:13], s[0:1], 56")
    P.ins("s_load_dwordx2 s[52:53], s[0:1], 32")
    if STAMP: P.ins("s_memrealtime s[58:59]")
    P.ins("s_and_b32 s14, s2, 7")
    P.ins("s_lshl_b32 s14, s14, 2")
    P.ins("s_bfe_u32 s15, s2, 0x20003")
    P.ins("s_add_u32 s14, s14, s15")
    P.ins("s_lshr_b32 s15, s2, 5")
    P.ins("v_lshrrev_b32 v1, 6, v0")
    P.ins("v_and_b32 v0, 63, v0")
    P.ins("s_nop 0")
    P.ins("v_readfirstlane_b32 s16, v1")
    P.ins("s_lshl_b32 s17, s15, 5")
    P.ins("s_add_u32 s17, s17, s14")
    P.ins("s_lshl_b32 s17, s17, 17")
    P.ins("s_mul_i32 s18, s15, 122880")
    P.ins("s_lshl_b32 s19, s14, 8")
    P.ins("s_mul_i32 s41, s15, 786432")
    P.ins("s_add_u32 s41, s41, s19")
    P.ins("s_waitcnt lgkmcnt(0)")
    stamp_setup(P, 12, 13, 0)
    srd(P, 48, 52, 53, 5242880)
    P.ins("s_add_u32 s4, s4, s18"); P.ins("s_addc_u32 s5, s5, 0")
    srd(P, 20, 4, 5, 122880)
    P.ins("s_add_u32 s6, s6, s17"); P.ins("s_addc_u32 s7, s7, 0")
    srd(P, 24, 6, 7, 131072)
    P.ins("s_add_u32 s8, s8, s17"); P.ins("s_addc_u32 s9, s9, 0")
    srd(P, 28, 8, 9, 131072)
    P.ins("s_add_u32 s10, s10, s19"); P.ins("s_addc_u32 s11, s11, 0")
    P.ins("s_sub_u32 s42, 5242880, s19")
    srd(P, 32, 10, 11, "s42")
    P.ins("s_add_u32 s12, s12, s41"); P.ins("s_addc_u32 s13, s13, 0")
    P.ins("s_sub_u32 s42, 786432, s19")
    srd(P, 36, 12, 13, "s42")
    P.ins("s_cmp_eq_u32 s16, 3")
    P.ins("s_cbranch_scc1 A_loader")
    pre = P.text()
    comp = gen_compute()
    load = gen_loader()
    return pre + comp + load + "A_end:\n    s_endpgm\n"

AK = 1
AV = 9
VO = 13
VM = 14
VL0 = 15; VL1 = 16
VMC = 17
VT = 18
QF = 24
SB = 56
TMP = 248
XF = 24
QACC = 184
AS = 0
AO = 64
AF = 128

def Sreg(kb, r=0, n=16):
    if kb < 12: return vr(SB + 16 * kb + r, n)
    return ar(AS + 16 * (kb - 12) + r, n)

def gen_compute():
    P = Prog()
    tags = {}
    ST = Stamper(); ST.stamp(P)
    P.ins("v_and_b32 v18, 31, v0")
    P.ins("v_lshrrev_b32 v19, 5, v0")
    P.ins("v_lshrrev_b32 v20, 4, v0")
    P.ins("v_and_b32 v21, 15, v0")
    P.ins("s_lshl_b32 s40, s16, 5")
    P.ins("v_add_u32 v22, s40, v18")
    P.ins("v_lshlrev_b32 v%d, 13, v22" % VO)
    P.ins("v_lshl_add_u32 v%d, v19, 4, v%d" % (VO, VO))
    P.ins("v_lshlrev_b32 v249, 2, v20")
    P.ins("v_xor_b32 v249, v21, v249")
    P.ins("v_lshlrev_b32 v249, 4, v249")
    P.ins("v_lshl_add_u32 v248, v20, 13, v249")
    def wtile(T):
        if T is None:
            P.ins("s_lshl_b32 m0, s46, 13")
            P.ins("s_add_u32 s40, s46, s45")
            P.ins("s_cmp_ge_u32 s40, 20")
            P.ins("s_cselect_b32 s41, 20, 0")
            P.ins("s_sub_u32 s40, s40, s41")
            P.ins("s_lshl_b32 s40, s40, 18")
            P.ins("s_add_u32 s46, s46, 1")
        else:
            P.ins("s_mov_b32 m0, %d" % (T * 8192))
            P.ins("s_mov_b32 s40, %d" % (T * 32 * 8192))
        for i in range(8):
            P.vm("buffer_load_dwordx4 v248, s[32:35], s40 offen lds")
            if i < 7:
                P.ins("s_add_u32 m0, m0, 1024")
                P.ins("s_add_u32 s40, s40, 32768")
    P.ins("s_and_b32 s43, s14, 3")
    P.ins("s_add_u32 s43, s43, s15")
    for _ in range(2):
        P.ins("s_cmp_ge_u32 s43, 5")
        P.ins("s_cselect_b32 s40, 5, 0")
        P.ins("s_sub_u32 s43, s43, s40")
    P.ins("s_lshl_b32 s45, s43, 2")
    P.ins("s_lshl_b32 s40, s16, 5")
    for j in range(4):
        P.ins("v_add_u32 v249, %d, v20" % (4 * j))
        P.ins("v_xor_b32 v254, v249, v21")
        P.ins("v_add_u32 v249, s40, v249")
        P.ins("v_mul_u32_u24 v249, 1280, v249")
        P.ins("v_lshl_add_u32 v%d, v254, 4, v249" % (250 + j))
    P.ins("s_add_u32 s47, s16, 1")
    P.ins("s_mul_i32 s47, s47, 40960")
    P.ins("s_mov_b32 m0, s47")
    P.ins("s_lshl_b32 s40, s43, 8")
    ST.stamp(P)
    for c in range(5):
        for i in range(8):
            if i == 4: P.ins("s_add_u32 s41, s40, 20480")
            if 'x' not in PX:
                P.vm("buffer_load_dwordx4 v%d, s[20:23], %s offen lds" % (250 + (i & 3), "s40" if i < 4 else "s41"))
            if not (c == 4 and i == 7): P.ins("s_add_u32 m0, m0, 1024")
        if c < 4:
            P.ins("s_add_u32 s40, s40, 256")
            P.ins("s_cmp_ge_u32 s40, 1280")
            P.ins("s_cselect_b32 s41, 1280, 0")
            P.ins("s_sub_u32 s40, s40, s41")
    ST.stamp(P)
    P.ins("s_mov_b32 s46, s16")
    if 'w' not in PX: wtile(None)
    P.ins("s_add_u32 s46, s16, 3")
    P.ins("s_cmp_eq_u32 s16, 2")
    P.ins("s_cselect_b32 s46, 2, s46")
    if 'w' not in PX: wtile(None)
    ST.stamp(P)
    P.ins("v_and_b32 v249, 1, v0")
    P.ins("v_bfe_u32 v250, v0, 1, 1")
    P.ins("v_lshrrev_b32 v251, 2, v21")
    P.ins("v_and_b32 v252, 1, v20")
    P.ins("v_lshl_or_b32 v252, v252, 1, v249")
    P.ins("v_lshlrev_b32 v252, 4, v252")
    P.ins("v_lshl_add_u32 v252, v250, 3, v252")
    P.ins("v_lshrrev_b32 v253, 1, v20")
    P.ins("v_lshl_add_u32 v254, v253, 3, v251")
    P.ins("v_lshl_add_u32 v254, v254, 8, v252")
    P.ins("v_lshl_add_u32 v255, v253, 2, v251")
    P.ins("v_lshl_add_u32 v255, v255, 8, v252")
    for db in range(4):
        P.ins("v_xor_b32 v249, %d, v251" % db)
        P.ins("v_lshl_add_u32 v%d, v249, 6, v254" % (AV + db))
    P.ins("v_mov_b32 v16, v255")
    P.ins("v_mov_b32 v17, v251")
    for s in range(8):
        P.ins("v_add_u32 v249, %d, v19" % (2 * s))
        P.ins("v_xor_b32 v249, v249, v21")
        P.ins("v_lshlrev_b32 v249, 4, v249")
        P.ins("v_lshl_add_u32 v%d, v18, 8, v249" % (AK + s))
    P.ins("s_mov_b32 s44, 0x%x" % f32bits(SC))
    ST.stamp(P)
    for s in range(8): P.ins("v_add_u32 v%d, s47, v%d" % (AK + s, AK + s))
    for c in range(5):
        P.ins("s_waitcnt vmcnt(%d)" % (16 + 32 - 8 * c))
        for s in range(8):
            P.ds("ds_read_b128 %s, v%d offset:%d" % (vr(XF + 4 * (8 * c + s), 4), AK + s, c * 8192))
    P.wait_ds_all()
    for s in range(8): P.ins("v_subrev_u32 v%d, s47, v%d" % (AK + s, AK + s))
    ST.stamp(P)
    if B0E:
        P.ins("s_waitcnt vmcnt(0)")
        P.ins("s_barrier")
    P.ins("s_mul_i32 s46, s16, 5")
    P.ins("s_add_u32 s46, s46, 5")
    for n in range(5): wtile(None)
    if not B0E:
        P.ins("s_waitcnt vmcnt(40)")
        P.ins("s_barrier")
    ST.stamp(P)
    def wreads(t):
        its = []
        buf = t % 2
        if t in (8, 16):
            for db in range(4):
                its.append(Item("v_add_u32 v%d, 0x10000, v%d" % (AV + db, AV + db)))
        for ks2 in range(2):
            for db in range(4):
                for r2 in range(2):
                    its.append(Item("ds_read_b64_tr_b16 %s, v%d offset:%d" % (
                        ar(AF + 32 * buf + (ks2 * 4 + db) * 4 + 2 * r2, 2), AV + db,
                        (t % 8) * 8192 + ks2 * 4096 + r2 * 1024), 'ds', tag=('w', t, ks2, db)))
        return its
    def wmfma(t):
        its = []
        buf = t % 2
        for ks2 in range(2):
            for db in range(4):
                c = "0" if (t == 0 and ks2 == 0) else vr(QACC + 16 * db, 16)
                its.append(Item("v_mfma_f32_32x32x16_bf16 %s, %s, %s, %s" % (
                    vr(QACC + 16 * db, 16), ar(AF + 32 * buf + (ks2 * 4 + db) * 4, 4),
                    vr(XF + 4 * (2 * t + ks2), 4), c), need=[('w', t, ks2, db)]))
        return its
    def qbar():
        P.wait_vm_all()
        P.wait_ds_all()
        P.ins("s_barrier")
    emit(P, wreads(0), tags)
    for t in range(20):
        mf = wmfma(t)
        rd = wreads(t + 1) if t < 19 else []
        bnd = (t + 1) in (5, 20)
        g0 = 3 if bnd else 0
        seq = []
        per = (len(rd) + 3) // 4
        for n, m in enumerate(mf):
            seq.append(m)
            if bnd and n == g0 - 1: seq.append(qbar)
            if g0 <= n < g0 + 4: seq += rd[per * (n - g0):per * (n - g0 + 1)]
        emit(P, seq, tags)
    for db in range(4):
        P.ins("v_xor_b32 v249, %d, v17" % db)
        P.ins("v_lshl_add_u32 v%d, v249, 6, v16" % (AV + db))
        P.ins("v_add_u32 v%d, 0x%x, v%d" % (AV + db, 131072, AV + db))
    P.ins("v_mov_b32 v%d, 0xff800000" % VM)
    for s in range(8):
        for p in range(4):
            a = QACC + 16 * (s >> 1) + 8 * (s & 1) + 2 * p
            P.ins("v_cvt_pk_bf16_f32 v%d, v%d, v%d" % (QF + 4 * s + p, a, a + 1))
    ST.stamp(P)
    VMCE = 248; VLE = 250
    VMCL = 24; VLL = 26
    VM2 = 15; VC = 16
    AO2 = 192
    P.ins("s_mov_b32 s45, s44")
    P.ins("v_mov_b32 v%d, 0xff800000" % VM2)
    def kreads(kb):
        its = []
        for s in range(8):
            its.append(Item("ds_read_b128 %s, v%d offset:%d" % (ar(AF + 32 * (kb % 2) + 4 * s, 4), AK + s, (kb % 8) * 8192),
                            'ds', tag=('k', kb, s)))
        return its
    def smfma(kb):
        its = []
        for s in range(8):
            c = "0" if s == 0 else Sreg(kb)
            its.append(Item("v_mfma_f32_32x32x16_bf16 %s, %s, %s, %s" % (
                Sreg(kb), ar(AF + 32 * (kb % 2) + 4 * s, 4), vr(QF + 4 * s, 4), c), need=[('k', kb, s)]))
        return its
    def maxops(kb):
        its = []
        M = VM if kb < 8 else VM2
        for p in range(8):
            if kb < 12:
                a = SB + 16 * kb + 2 * p
                its.append(Item("v_max3_f32 v%d, v%d, v%d, v%d" % (M, a, a + 1, M)))
            else:
                a = AS + 16 * (kb - 12) + 2 * p
                t0 = 252 + 2 * (p % 2)
                its.append(Item("v_accvgpr_read_b32 v%d, a%d" % (t0, a)))
                its.append(Item("v_accvgpr_read_b32 v%d, a%d" % (t0 + 1, a + 1)))
                its.append(Item("v_max3_f32 v%d, v%d, v%d, v%d" % (M, t0, t0 + 1, M)))
        return its
    def xmax(M):
        return [Item("v_mov_b32 v%d, v%d" % (VT, M)), Item("v_mov_b32 v%d, v%d" % (VT + 1, M)),
                Item("v_permlane32_swap_b32 v%d, v%d" % (VT, VT + 1)),
                Item("v_max_f32 v%d, v%d, v%d" % (M, VT, VT + 1))]
    def barrier():
        P.wait_ds_all()
        P.ins("s_barrier")
    def Preg(kk):
        kb = kk >> 1; u = kk & 1
        if kb < 12: return SB + 16 * kb + 4 * u
        i2 = 2 * (kb - 12) + u
        return SB + 16 * i2 + 8
    def eops(kb):
        its = []
        MC, L = (VMCE, VLE) if kb < 8 else (VMCL, VLL)
        if kb < 12:
            regs = [SB + 16 * kb + r for r in range(16)]
        else:
            regs = [SB + 16 * (2 * (kb - 12) + (r >> 3)) + 8 + (r & 7) for r in range(16)]
        def dst(p):
            if kb < 12: return SB + 16 * kb + p
            return SB + 16 * (2 * (kb - 12) + (p >> 2)) + 8 + (p & 3)
        for p in range(11):
            if p < 8:
                a = regs[2 * p]
                if kb >= 12:
                    its.append(Item("v_accvgpr_read_b32 v%d, a%d" % (a, AS + 16 * (kb - 12) + 2 * p)))
                    its.append(Item("v_accvgpr_read_b32 v%d, a%d" % (a + 1, AS + 16 * (kb - 12) + 2 * p + 1)))
                its.append(Item("v_fma_f32 v%d, v%d, s44, -v%d" % (a, a, MC)))
                its.append(Item("v_fma_f32 v%d, v%d, s44, -v%d" % (a + 1, a + 1, MC)))
            if 0 <= p - 1 < 8:
                a = regs[2 * (p - 1)]
                its.append(Item("v_exp_f32 v%d, v%d" % (a, a)))
                its.append(Item("v_exp_f32 v%d, v%d" % (a + 1, a + 1)))
            if 0 <= p - 2 < 8:
                a = regs[2 * (p - 2)]
                its.append(Item("v_add_f32 v%d, v%d, v%d" % (L, L, a)))
                its.append(Item("v_add_f32 v%d, v%d, v%d" % (L + 1, L + 1, a + 1)))
            if 0 <= p - 3 < 8:
                q = p - 3
                its.append(Item("v_cvt_pk_bf16_f32 v%d, v%d, v%d" % (dst(q), regs[2 * q], regs[2 * q + 1])))
        return its
    barrier()
    emit(P, kreads(0), tags)
    for kb in range(16):
        mf = smfma(kb)
        seq = []
        nxt = kb + 1
        pre_items = []
        if nxt < 16:
            if nxt in (2, 6, 10, 14):
                pre_items.append(barrier)
            if nxt == 8:
                for s in range(8):
                    pre_items.append(Item("v_add_u32 v%d, 0x10000, v%d" % (AK + s, AK + s)))
            rd = kreads(nxt)
        else:
            rd = []
        fill = maxops(kb - 1) if kb >= 1 else []
        if kb == 8:
            fill += xmax(VM) + [Item("v_mul_f32 v%d, s44, v%d" % (VMCE, VM)), Item("v_mul_f32 v%d, s44, v%d" % (VMCE + 1, VM)),
                                Item("v_mov_b32 v%d, 0" % VLE), Item("v_mov_b32 v%d, 0" % (VLE + 1))]
        if kb >= 9: fill += eops(kb - 9)
        seq += pre_items
        for n, m in enumerate(mf):
            seq.append(m)
            if n < 4: seq += rd[2 * n:2 * n + 2]
            if n >= 2:
                k0 = (len(fill) * (n - 2)) // 6; k1 = (len(fill) * (n - 1)) // 6
                seq += fill[k0:k1]
        emit(P, seq, tags)
    e7 = eops(7)
    emit(P, e7[:12] + maxops(15) + e7[12:] + xmax(VM2), tags)
    P.ins("v_max_f32 v%d, v%d, v%d" % (VM2, VM, VM2))
    P.ins("v_mul_f32 v%d, s44, v%d" % (VMCL, VM2))
    P.ins("v_mul_f32 v%d, s44, v%d" % (VMCL + 1, VM2))
    P.ins("v_sub_f32 v%d, v%d, v%d" % (VC, VMCE, VMCL))
    P.ins("v_exp_f32 v%d, v%d" % (VC, VC))
    P.ins("v_mov_b32 v%d, 0" % VLL)
    P.ins("v_mov_b32 v%d, 0" % (VLL + 1))
    ST.stamp(P)
    def vbase(j): return (j - 2) * 16384 if j >= 2 else 131072 + j * 16384
    def vreads(kk):
        its = []
        for db in range(4):
            for r2 in range(2):
                its.append(Item("ds_read_b64_tr_b16 %s, v%d offset:%d" % (
                    ar(AF + 16 * (kk % 4) + 4 * db + 2 * r2, 2), AV + db, (kk & 3) * 4096 + r2 * 2048),
                    'ds', tag=('v', kk, db)))
        return its
    def pmfma(kk):
        its = []
        A = AO if kk < 16 else AO2
        for db in range(4):
            c = "0" if kk in (0, 16) else ar(A + 16 * db, 16)
            its.append(Item("v_mfma_f32_32x32x16_bf16 %s, %s, %s, %s" % (
                ar(A + 16 * db, 16), ar(AF + 16 * (kk % 4) + 4 * db, 4), vr(Preg(kk), 4), c), need=[('v', kk, db)]))
        return its
    def pbar(j):
        def f():
            if j not in (1, 3): P.ins("s_barrier")
            if j > 0:
                d = vbase(j) - vbase(j - 1)
                for db in range(4):
                    P.ins("v_add_u32 v%d, 0x%x, v%d" % (AV + db, d & 0xffffffff, AV + db))
        return f
    ework = []
    for kb in range(8, 16): ework += [(kb, it) for it in eops(kb)]
    emit(P, [pbar(0)] + vreads(0) + vreads(1), tags)
    epos = 0
    acc = 0.0
    blk_len = len(eops(8))
    for kk in range(32):
        mf = pmfma(kk)
        fill = []
        acc += 0.42 * blk_len
        tgt = int(acc)
        must = (kk + 1) >> 1
        while epos < len(ework) and (epos < tgt or ework[epos][0] <= must):
            fill.append(ework[epos][1]); epos += 1
        pre_items = []
        rd = []
        n2 = kk + 2
        if n2 < 32:
            if n2 % 4 == 0: pre_items.append(pbar(n2 // 4))
            rd = vreads(n2)
        seq = list(pre_items)
        fl = rd + fill
        seq += interleave(mf, fl)
        emit(P, seq, tags)
        if kk % 8 == 7: ST.stamp(P)
    assert epos == len(ework)
    P.ins("v_add_f32 v%d, v%d, v%d" % (VLE, VLE, VLE + 1))
    P.ins("v_add_f32 v%d, v%d, v%d" % (VLL, VLL, VLL + 1))
    P.ins("v_fma_f32 v%d, v%d, v%d, v%d" % (VLE, VLE, VC, VLL))
    P.ins("v_mov_b32 v%d, v%d" % (VT, VLE))
    P.ins("v_mov_b32 v%d, v%d" % (VT + 1, VLE))
    P.ins("v_permlane32_swap_b32 v%d, v%d" % (VT, VT + 1))
    P.ins("v_add_f32 v%d, v%d, v%d" % (VLE, VT, VT + 1))
    P.ins("v_rcp_f32 v%d, v%d" % (VLL, VLE))
    P.ins("v_mul_f32 v%d, v%d, v%d" % (VC, VC, VLL))
    P.ins("v_mov_b32 v%d, v%d" % (VLL + 1, VLL))
    P.ins("v_mov_b32 v%d, v%d" % (VLE, VC))
    P.ins("v_mov_b32 v%d, v%d" % (VLE + 1, VC))
    P.ins("s_lshl_b32 s41, s16, 13")
    P.ins("s_add_u32 s41, s41, 98304")
    P.ins("v_lshrrev_b32 v%d, 5, v0" % VT)
    P.ins("v_and_b32 v%d, 15, v0" % (VT + 1))
    P.ins("v_xor_b32 v%d, v%d, v%d" % (VT, VT, VT + 1))
    P.ins("v_and_b32 v%d, 31, v0" % (VT + 1))
    P.ins("v_lshlrev_b32 v%d, 8, v%d" % (VT + 1, VT + 1))
    P.ins("v_add_u32 v%d, s41, v%d" % (VT + 1, VT + 1))
    for db in range(4):
        base = SB + 32 * db
        for r in range(16):
            P.ins("v_accvgpr_read_b32 v%d, a%d" % (base + r, AO + 16 * db + r))
        for r in range(16):
            P.ins("v_accvgpr_read_b32 v%d, a%d" % (base + 16 + r, AO2 + 16 * db + r))
        for p in range(8):
            P.ins("v_pk_mul_f32 %s, %s, %s" % (vr(base + 2 * p, 2), vr(base + 2 * p, 2), vr(VLE, 2)))
        for p in range(8):
            P.ins("v_pk_fma_f32 %s, %s, %s, %s" % (vr(base + 2 * p, 2), vr(base + 16 + 2 * p, 2), vr(VLL, 2), vr(base + 2 * p, 2)))
        ob = SB + 128 + 8 * db
        for p in range(8):
            P.ins("v_cvt_pk_bf16_f32 v%d, v%d, v%d" % (ob + p, base + 2 * p, base + 2 * p + 1))
        for u in range(2):
            P.ins("v_xor_b32 v%d, %d, v%d" % (VT + 2 + u, 4 * db + 2 * u, VT))
            P.ins("v_lshl_add_u32 v%d, v%d, 4, v%d" % (VT + 2 + u, VT + 2 + u, VT + 1))
            P.ds("ds_write_b128 v%d, %s" % (VT + 2 + u, vr(ob + 4 * u, 4)))
    P.ins("v_lshrrev_b32 v%d, 4, v0" % VT)
    P.ins("v_and_b32 v%d, 15, v0" % (VT + 1))
    P.ins("s_lshl_b32 s40, s16, 5")
    P.ins("v_add_u32 v%d, s40, v%d" % (VO, VT))
    P.ins("v_lshlrev_b32 v%d, 13, v%d" % (VO, VO))
    P.ins("v_lshl_add_u32 v%d, v%d, 4, v%d" % (VO, VT + 1, VO))
    for j in range(4):
        P.ins("v_add_u32 v%d, %d, v%d" % (VT + 2, 4 * j, VT))
        P.ins("v_xor_b32 v%d, v%d, v%d" % (VT + 3, VT + 2, VT + 1))
        P.ins("v_lshlrev_b32 v%d, 4, v%d" % (VT + 3, VT + 3))
        P.ins("v_lshl_add_u32 v%d, v%d, 8, v%d" % (AK + j, VT + 2, VT + 3))
        P.ins("v_add_u32 v%d, s41, v%d" % (AK + j, AK + j))
    P.wait_ds_all()
    rt = []
    for i in range(8):
        rt.append(P.ds("ds_read_b128 %s, v%d offset:%d" % (vr(SB + 4 * i, 4), AK + (i & 3), (i >> 2) * 4096)))
    for i in range(8):
        P.wait_ds(rt[i])
        P.ins("s_mov_b32 s40, %d" % (i * 32768))
        P.vm("buffer_store_dwordx4 %s, v%d, s[36:39], s40 offen%s" % (vr(SB + 4 * i, 4), VO, " sc1" if FUSED else ""))
    ST.stamp(P)
    if STAMP or FUSED: P.wait_vm_all()
    ST.stamp(P)
    ST.dump(P, 200, 0)
    if FUSED: P.ins("s_branch O_start")
    else: P.ins("s_endpgm")
    return P.text()

def gen_loader():
    P = Prog()
    P.label("A_loader")
    tags = {}
    ST = Stamper(); ST.stamp(P)
    P.ins("v_lshrrev_b32 v1, 4, v0")
    P.ins("v_and_b32 v2, 15, v0")
    P.ins("v_lshlrev_b32 v8, 4, v0")
    def vstage(bf, i):
        n = bf * 16 + i
        if n < 58: return vr(24 + 4 * n, 4)
        return ar(4 * (n - 58), 4)
    bufof = {}
    def toreg(n, bf):
        bufof[n] = bf
        sr = "s[24:27]" if n < 8 else "s[28:31]"
        for g in range(4):
            P.wait_vm(P.vm_issued - (LIM - 4))
            P.ins("s_mov_b32 s40, %d" % ((n % 8) * 16384 + g * 4096))
            for i in range(4):
                tags[n] = P.vm("buffer_load_dwordx4 %s, v8, %s, s40 offen offset:%d nt" % (vstage(bf, 4 * g + i), sr, i * 1024))
    for i in range(4):
        P.ins("v_add_u32 v3, %d, v1" % (4 * i))
        P.ins("v_xor_b32 v3, v3, v2")
        P.ins("v_lshlrev_b32 v3, 4, v3")
        P.ins("v_lshl_add_u32 v%d, v1, 8, v3" % (4 + i))
        P.ins("v_add_u32 v%d, 0x10000, v%d" % (12 + i, 4 + i))
    P.ins("v_lshlrev_b32 v3, 2, v1")
    P.ins("v_xor_b32 v3, v3, v2")
    P.ins("v_lshlrev_b32 v3, 4, v3")
    P.ins("v_lshl_add_u32 v9, v1, 8, v3")
    P.ins("v_add_u32 v10, 0x20000, v9")
    def dump(n):
        P.wait_vm(tags[n])
        bf = bufof[n]
        for i in range(16):
            if n < 8:
                a = (4 if n < 4 else 12) + (i & 3)
                P.ds("ds_write_b128 v%d, %s offset:%d" % (a, vstage(bf, i), (n % 4) * 16384 + i * 1024))
            elif n < 10:
                P.ds("ds_write_b128 v10, %s offset:%d" % (vstage(bf, i), (n - 8) * 16384 + i * 1024))
            else:
                P.ds("ds_write_b128 v9, %s offset:%d" % (vstage(bf, i), (n - 10) * 16384 + i * 1024))
        P.wait_ds_all()
    def vdma(j):
        for g in range(4):
            P.wait_vm(P.vm_issued - (LIM2 - 4))
            P.ins("s_mov_b32 m0, %d" % ((j - 2) * 16384 + g * 4096))
            P.ins("s_mov_b32 s40, %d" % (j * 16384 + g * 4096))
            for i in range(4):
                tags[8 + j] = P.vm("buffer_load_dwordx4 v9, s[28:31], s40 offen offset:%d nt lds" % (i * 1024))
    def bar():
        P.ins("s_barrier"); ST.stamp(P)
    ST.stamp(P)
    global LIM
    sv = LIM; LIM = PLIM
    for n in range(PRE): toreg(n, n)
    LIM = sv
    bar()
    for n in range(PRE, PRE + 3): toreg(n, n)
    bar()
    for n in range(PRE + 3, 7): toreg(n, n)
    bar()
    dump(0); bar()
    dump(1); dump(2); bar()
    toreg(7, 0); dump(3); toreg(8, 1); dump(4); bar()
    toreg(9, 2); dump(5); toreg(10, 3); dump(6); bar()
    toreg(11, 4); dump(7); bar()
    toreg(12, 5); dump(8); toreg(13, 6); dump(9); bar()
    vdma(6); dump(10); vdma(7)
    if WTOUCH:
        P.ins("s_lshr_b32 s40, s2, 3")
        P.ins("s_mul_i32 s40, s40, %d" % (128 * 1280))
        P.ins("s_and_b32 s41, s2, 1")
        P.ins("s_mul_i32 s41, s41, 640")
        P.ins("s_add_u32 s40, s40, s41")
        for n in range(10):
            P.ins("v_add_u32 v16, %d, v0" % (64 * n))
            P.ins("v_mul_u32_u24 v17, 205, v16")
            P.ins("v_lshrrev_b32 v17, 10, v17")
            P.ins("v_mul_u32_u24 v18, 5, v17")
            P.ins("v_sub_u32 v16, v16, v18")
            P.ins("v_mul_u32_u24 v17, 1280, v17")
            P.ins("v_lshl_add_u32 v%d, v16, 7, v17" % (20 + (n & 1)))
            P.vm("buffer_load_dword v%d, v%d, s[48:51], s40 offen" % (22 + (n & 1), 20 + (n & 1)))
    dump(11); bar()
    dump(12); bar()
    dump(13); bar()
    for j in range(6, 8):
        P.wait_vm(tags[8 + j]); bar()
    ST.dump(P, 16, 0)
    if FUSED: P.ins("s_branch O_start")
    else: P.ins("s_endpgm")
    return P.text()

def gen_oproj():
    P = Prog()
    tags = {}
    ST = Stamper()
    if FUSED:
        P.label("O_start")
        P.ins("s_load_dwordx4 s[4:7], s[0:1], 32")
        P.ins("s_load_dwordx4 s[8:11], s[0:1], 48")
        if STAMP: P.ins("s_memrealtime s[58:59]")
        P.ins("s_waitcnt vmcnt(0) lgkmcnt(0)")
        P.ins("s_barrier")
        srd(P, 12, 8, 9, 256)
        P.ins("s_mov_b32 s8, s10"); P.ins("s_mov_b32 s9, s11")
        P.ins("s_cmp_eq_u32 s16, 0")
        P.ins("s_cbranch_scc0 O_nosig")
        P.ins("s_lshr_b32 s17, s2, 5")
        P.ins("s_lshl_b32 s17, s17, 5")
        P.ins("v_mov_b32 v1, 1")
        P.ins("v_mov_b32 v2, s17")
        P.ins("v_cmp_eq_u32 vcc, 0, v0")
        P.ins("s_and_saveexec_b64 s[18:19], vcc")
        P.ins("buffer_atomic_add v1, v2, s[12:15], 0 offen sc1")
        P.ins("s_mov_b64 exec, s[18:19]")
        P.label("O_nosig")
        P.ins("s_cmp_ge_u32 s2, 240")
        P.ins("s_cbranch_scc1 O_end")
        P.ins("s_mov_b32 s50, s16")
        P.ins("s_mov_b32 s[52:53], s[12:13]".replace("s_mov_b32", "s_mov_b64"))
        P.ins("s_mov_b64 s[54:55], s[14:15]")
    else:
        P.raw(".globl oproj_kernel\n.p2align 8\n.type oproj_kernel,@function\noproj_kernel:")
        P.ins("s_cmp_ge_u32 s2, 240")
        P.ins("s_cbranch_scc1 O_end")
        P.ins("s_load_dwordx4 s[4:7], s[0:1], 32")
        P.ins("s_load_dwordx2 s[8:9], s[0:1], 56")
        if STAMP: P.ins("s_memrealtime s[58:59]")
    P.ins("s_and_b32 s14, s2, 7")
    P.ins("s_lshr_b32 s15, s2, 3")
    P.ins("s_mul_i32 s16, s15, 52")
    P.ins("s_lshr_b32 s16, s16, 8")
    P.ins("s_mul_i32 s17, s16, 5")
    P.ins("s_sub_u32 s17, s15, s17")
    P.ins("s_mul_i32 s48, s16, 3")
    P.ins("s_mul_i32 s49, s17, 5")
    P.ins("s_add_u32 s48, s48, s49")
    P.ins("s_lshr_b32 s18, s14, 1")
    P.ins("s_mul_i32 s18, s18, 192")
    P.ins("s_lshl_b32 s19, s16, 5")
    P.ins("s_add_u32 s18, s18, s19")
    P.ins("s_and_b32 s19, s14, 1")
    P.ins("s_mul_i32 s19, s19, 320")
    P.ins("s_lshl_b32 s17, s17, 6")
    P.ins("s_add_u32 s19, s19, s17")
    if FUSED:
        P.ins("s_mul_i32 s51, s18, 683")
        P.ins("s_lshr_b32 s51, s51, 16")
        P.ins("s_lshl_b32 s51, s51, 5")
        P.ins("s_mov_b32 s16, s50")
    else:
        P.ins("v_lshrrev_b32 v1, 6, v0")
        P.ins("v_and_b32 v0, 63, v0")
        P.ins("s_nop 0")
        P.ins("v_readfirstlane_b32 s16, v1")
    P.ins("s_lshl_b32 s40, s18, 13")
    P.ins("s_lshl_b32 s45, s16, 11")
    P.ins("s_add_u32 s40, s40, s45")
    P.ins("s_mul_i32 s41, s18, 1280")
    P.ins("s_lshl_b32 s42, s19, 1")
    P.ins("s_add_u32 s41, s41, s42")
    P.ins("s_mul_i32 s43, s16, %d" % (1024 * 1280))
    P.ins("s_add_u32 s43, s43, s42")
    P.ins("s_mul_i32 s46, s16, 40960")
    P.ins("v_and_b32 v18, 31, v0")
    P.ins("v_lshrrev_b32 v19, 5, v0")
    P.ins("v_lshrrev_b32 v20, 4, v0")
    P.ins("v_and_b32 v21, 15, v0")
    P.ins("v_lshrrev_b32 v3, 3, v0")
    P.ins("v_bfe_u32 v4, v0, 4, 1")
    P.ins("v_lshlrev_b32 v4, 2, v4")
    P.ins("v_and_b32 v5, 7, v0")
    P.ins("v_xor_b32 v4, v4, v5")
    P.ins("v_lshlrev_b32 v4, 4, v4")
    P.ins("v_mul_u32_u24 v6, 1280, v3")
    P.ins("v_add_u32 v24, v6, v4")
    for i in range(1, 4):
        P.ins("v_add_u32 v%d, %d, v24" % (24 + i, i * (10240 - 1024)))
    for j in range(4):
        P.ins("v_add_u32 v4, %d, v20" % (4 * (j & 1)))
        P.ins("v_xor_b32 v4, v4, v5")
        P.ins("v_lshlrev_b32 v4, 4, v4")
        P.ins("v_lshl_add_u32 v4, v3, 13, v4")
        P.ins("v_add_u32 v%d, %d, v4" % (28 + j, j * (65536 - 1024)))
    P.ins("s_waitcnt lgkmcnt(0)")
    stamp_setup(P, 8, 9, 1)
    ST.stamp(P)
    P.ins("s_add_u32 s4, s4, s43"); P.ins("s_addc_u32 s5, s5, 0")
    P.ins("s_sub_u32 s44, 5242880, s43")
    srd(P, 20, 4, 5, "s44")
    P.ins("s_add_u32 s8, s8, s40"); P.ins("s_addc_u32 s9, s9, 0")
    P.ins("s_sub_u32 s44, %d, s45" % (32 * 8192))
    srd(P, 28, 8, 9, "s44")
    NS = 3
    SL = 12288
    def dma(t, part=3):
        sl = (t % NS) * SL
        P.ins("s_add_u32 s47, s48, %d" % t)
        P.ins("s_and_b32 s47, s47, 15")
        if part & 1:
            P.ins("s_mul_i32 s49, s47, 81920")
            for sub in range(2):
                P.ins("s_add_u32 m0, s46, %d" % (sl + 4096 * sub))
                if sub: P.ins("s_add_u32 s49, s49, 40960")
                for i in range(4):
                    tags[('T', t)] = P.vm("buffer_load_dwordx4 v%d, s[20:23], s49 offen offset:%d lds" % (24 + i, i * 1024))
        if part & 2:
            P.ins("s_lshl_b32 s47, s47, 7")
            P.ins("s_add_u32 m0, s46, %d" % (sl + 8192))
            for j in range(4):
                tags[('T', t)] = P.vm("buffer_load_dwordx4 v%d, s[28:31], s47 offen offset:%d lds" % (28 + j, j * 1024))
    ST.stamp(P)
    if FUSED:
        for t in range(NS): dma(t, 1)
        ST.stamp(P)
        P.ins("s_cmp_eq_u32 s16, 0")
        P.ins("s_cbranch_scc0 O_nopoll")
        P.ins("v_mov_b32 v2, s51")
        P.ins("s_mov_b32 s56, 0")
        P.label("O_poll")
        P.ins("buffer_load_dword v1, v2, s[52:55], 0 offen sc1")
        P.ins("s_waitcnt vmcnt(0)")
        P.ins("v_readfirstlane_b32 s57, v1")
        P.ins("s_add_u32 s56, s56, 1")
        P.ins("s_cmp_ge_u32 s56, 0x40000")
        P.ins("s_cbranch_scc1 O_pdone")
        P.ins("s_cmp_ge_u32 s57, 32")
        P.ins("s_cbranch_scc1 O_pdone")
        P.ins("s_sleep 4")
        P.ins("s_branch O_poll")
        P.label("O_pdone")
        P.ins("buffer_inv sc1")
        P.ins("s_waitcnt vmcnt(0)")
        P.label("O_nopoll")
        P.ins("s_barrier")
        ST.stamp(P)
        for t in range(NS): dma(t, 2)
    else:
        for t in range(NS): dma(t)
    P.ins("s_add_u32 s6, s6, s41"); P.ins("s_addc_u32 s7, s7, 0")
    P.ins("s_sub_u32 s44, 983040, s41")
    srd(P, 24, 6, 7, "s44")
    P.ins("v_and_b32 v6, 1, v0")
    P.ins("v_bfe_u32 v7, v0, 1, 1")
    P.ins("v_lshrrev_b32 v8, 2, v21")
    P.ins("v_and_b32 v9, 1, v20")
    P.ins("v_lshl_or_b32 v9, v9, 1, v6")
    P.ins("v_lshlrev_b32 v9, 4, v9")
    P.ins("v_lshl_add_u32 v9, v7, 3, v9")
    P.ins("v_lshrrev_b32 v10, 1, v20")
    P.ins("v_lshl_add_u32 v10, v10, 3, v8")
    P.ins("v_lshl_add_u32 v9, v10, 7, v9")
    P.ins("v_add_u32 v9, s46, v9")
    P.ins("v_bfe_u32 v10, v0, 3, 1")
    for nb in range(2):
        P.ins("v_xor_b32 v11, %d, v10" % nb)
        P.ins("v_lshl_add_u32 v%d, v11, 6, v9" % (12 + nb))
    P.ins("v_bfe_u32 v6, v0, 1, 3")
    P.ins("v_lshlrev_b32 v7, 7, v18")
    P.ins("v_add_u32 v7, s46, v7")
    for ks in range(4):
        P.ins("v_add_u32 v8, %d, v19" % (2 * ks))
        P.ins("v_xor_b32 v8, v8, v6")
        P.ins("v_lshl_add_u32 v%d, v8, 4, v7" % (14 + ks))
    ACC = 32
    FR = 64
    FB = 96
    ST.stamp(P)
    for t in range(16):
        sl = (t % NS) * SL
        P.wait_vm(tags[('T', t)])
        if t == 0: ST.stamp(P)
        seq = []
        for ks in range(4):
            seq.append(Item("ds_read_b128 %s, v%d offset:%d" % (vr(FB + 4 * ks, 4), 14 + ks, sl + 8192), 'ds'))
            for nb in range(2):
                for r2 in range(2):
                    seq.append(Item("ds_read_b64_tr_b16 %s, v%d offset:%d" % (
                        vr(FR + (ks * 2 + nb) * 4 + 2 * r2, 2), 12 + nb,
                        sl + (ks >> 1) * 4096 + (ks & 1) * 2048 + r2 * 512), 'ds', tag=('r', t, ks, nb)))
        n = 0
        for ks in range(4):
            for nb in range(2):
                c = "0" if (t == 0 and ks == 0) else vr(ACC + 16 * nb, 16)
                seq.append(Item("v_mfma_f32_32x32x16_bf16 %s, %s, %s, %s" % (
                    vr(ACC + 16 * nb, 16), vr(FR + (ks * 2 + nb) * 4, 4), vr(FB + 4 * ks, 4), c),
                    need=[('r', t, ks, nb)]))
                n += 1
                if n == 4 and t + NS < 16:
                    def f(t=t):
                        P.wait_ds_all()
                        dma(t + NS)
                    seq.append(f)
        emit(P, seq, tags)
        if t % 2 == 1: ST.stamp(P)
    P.ins("v_lshlrev_b32 v4, 4, v0")
    P.ins("v_add_u32 v5, s46, v4")
    for j in range(8):
        P.ds("ds_write_b128 v5, %s offset:%d" % (vr(ACC + 4 * j, 4), j * 1024))
    P.wait_ds_all()
    P.ins("s_barrier")
    P.ins("s_lshl_b32 s47, s16, 11")
    P.ins("v_add_u32 v5, s47, v4")
    P.ins("v_add_u32 v6, 81920, v5")
    for w in range(4):
        for q in range(2):
            a = "v5" if w < 2 else "v6"
            P.ds("ds_read_b128 %s, %s offset:%d" % (vr(64 + 8 * w + 4 * q, 4), a, (w % 2) * 40960 + q * 1024))
    P.wait_ds_all()
    for r in range(8):
        P.ins("v_add_f32 v%d, v%d, v%d" % (64 + r, 64 + r, 72 + r))
        P.ins("v_add_f32 v%d, v%d, v%d" % (80 + r, 80 + r, 88 + r))
    for r in range(8):
        P.ins("v_add_f32 v%d, v%d, v%d" % (64 + r, 64 + r, 80 + r))
    for p in range(4):
        P.ins("v_cvt_pk_bf16_f32 v%d, v%d, v%d" % (96 + p, 64 + 2 * p, 64 + 2 * p + 1))
    P.ins("v_mul_u32_u24 v7, 1280, v18")
    P.ins("v_lshl_add_u32 v7, v19, 4, v7")
    P.ins("s_lshl_b32 s47, s16, 5")
    P.ins("v_add_u32 v7, s47, v7")
    P.vm("buffer_store_dwordx4 v[96:99], v7, s[24:27], 0 offen")
    ST.stamp(P)
    if STAMP: P.wait_vm_all()
    ST.stamp(P)
    ST.dump(P, 100, 1)
    P.label("O_end")
    P.ins("s_endpgm")
    return P.text()

HEAD = """; Kernarg layout for this problem (64 bytes, ptrs only, base s[0:1]):
;   0 x, 8 k_cache, 16 v_cache, 24 wq, 32 wo, 40 out, 48 debug, 56 ws
""" + ("""; @launch grid=(256,1,1) block=(256,1,1) lds=163840
""" if FUSED else """; @launch kernel=attn_kernel grid=(256,1,1) block=(256,1,1) lds=163840
; @launch kernel=oproj_kernel grid=(240,1,1) block=(256,1,1) lds=163840
""") + """.amdgcn_target "amdgcn-amd-amdhsa--gfx950"
.text
"""
def kd(name, vg, acc):
    return """.amdhsa_kernel %s
  .amdhsa_next_free_vgpr %d
  .amdhsa_next_free_sgpr 102
  .amdhsa_accum_offset %d
  .amdhsa_group_segment_fixed_size 0
  .amdhsa_kernarg_size 64
  .amdhsa_user_sgpr_count 2
  .amdhsa_user_sgpr_kernarg_segment_ptr 1
  .amdhsa_system_sgpr_workgroup_id_x 1
.end_amdhsa_kernel
""" % (name, vg, acc)

if __name__ == "__main__":
    a, n1 = pad_hazards(gen_attn())
    o, n2 = pad_hazards(gen_oproj())
    print("pads", n1, n2, file=sys.stderr)
    s = HEAD + a + "\n" + o + '\n.section .rodata,"a"\n.p2align 6\n' + kd(KNAME, 512, 256) + ("" if FUSED else ".p2align 6\n" + kd("oproj_kernel", 128, 128))
    open(sys.argv[1], "w").write(s)
```

```python
import sys
from asmlib import *

NVREG = 6
WBASE = 131072
SC = 0.08838834764831845 * 1.4426950408889634
import struct
def f32bits(x): return struct.unpack('<I', struct.pack('<f', x))[0]

def vr(b, n=1): return "v%d" % b if n == 1 else "v[%d:%d]" % (b, b + n - 1)
def ar(b, n=1): return "a%d" % b if n == 1 else "a[%d:%d]" % (b, b + n - 1)

class Item:
    def __init__(self, t, k='x', tag=None, need=(), needvm=()):
        self.t = t; self.k = k; self.tag = tag; self.need = need; self.needvm = needvm

def emit(P, items, tags):
    for it in items:
        if callable(it):
            it(); continue
        for n in it.need: P.wait_ds(tags[n])
        for n in it.needvm: P.wait_vm(tags[n])
        if it.k == 'ds':
            tg = P.ds(it.t)
        elif it.k == 'vm':
            tg = P.vm(it.t)
        else:
            P.ins(it.t); tg = None
        if it.tag is not None: tags[it.tag] = tg

import os
STAMP = int(os.environ.get("STAMP", "0"))
LIM = int(os.environ.get("LIM", "64"))
PX = ""
B0E = int(os.environ.get("B0E", "0"))
WTOUCH = int(os.environ.get("WTOUCH", "1"))
FUSED = int(os.environ.get("FUSED", "1"))
KNAME = "standalone__gqa_block_cached__near_ridge_kernel" if FUSED else "attn_kernel"
PRE = int(os.environ.get("PRE", "0"))
INV = int(os.environ.get("INV", "0"))
PKF = int(os.environ.get("PKF", "0"))
OIL = int(os.environ.get("OIL", "2"))
PLIM = int(os.environ.get("PLIM", "16"))
LIM2 = int(os.environ.get("LIM2", "64"))
class Stamper:
    def __init__(self): self.n = 0
    def stamp(self, P):
        if not STAMP: return
        P.wait_ds_all()
        P.ins("s_memtime s[56:57]")
        P.ins("s_waitcnt lgkmcnt(0)")
        P.ins("s_mov_b32 s%d, s56" % (64 + self.n))
        self.n += 1
        assert self.n <= 30
    def dump(self, P, vtmp, kern):
        if not STAMP: return
        P.ins("v_mov_b32 v%d, 0" % vtmp)
        for i in range(30):
            P.ins("v_writelane_b32 v%d, s%d, %d" % (vtmp, 64 + i, i))
        P.ins("v_writelane_b32 v%d, s58, 30" % vtmp)
        P.ins("s_memrealtime s[56:57]")
        P.ins("s_waitcnt lgkmcnt(0)")
        P.ins("v_writelane_b32 v%d, s56, 31" % vtmp)
        P.ins("s_lshl_b32 s56, s2, 2")
        P.ins("s_add_u32 s56, s56, s16")
        P.ins("s_lshl_b32 s56, s56, 7")
        P.ins("v_lshlrev_b32 v%d, 2, v0" % (vtmp + 1))
        P.ins("v_cmp_gt_u32 vcc, 32, v0")
        P.ins("s_and_saveexec_b64 s[54:55], vcc")
        P.ins("buffer_store_dword v%d, v%d, s[60:63], s56 offen offset:0" % (vtmp, vtmp + 1))
        P.ins("s_mov_b64 exec, s[54:55]")
def stamp_setup(P, wslo, wshi, kern):
    if not STAMP: return
    P.ins("s_add_u32 s60, s%d, 0x%x" % (wslo, (16 + 1 * kern) << 20))
    P.ins("s_addc_u32 s61, s%d, 0" % wshi)
    P.ins("s_and_b32 s61, s61, 0xffff")
    P.ins("s_mov_b32 s62, 0x100000")
    P.ins("s_mov_b32 s63, 0x00020000")

def srd(P, d, blo, bhi, size):
    P.ins("s_mov_b32 s%d, s%d" % (d, blo))
    P.ins("s_and_b32 s%d, s%d, 0xffff" % (d + 1, bhi))
    if isinstance(size, str): P.ins("s_mov_b32 s%d, %s" % (d + 2, size))
    else: P.ins("s_mov_b32 s%d, 0x%x" % (d + 2, size))
    P.ins("s_mov_b32 s%d, 0x00020000" % (d + 3))

def gen_attn():
    P = Prog()
    P.raw(".globl %s\n.p2align 8\n.type %s,@function\n%s:" % (KNAME, KNAME, KNAME))
    P.ins("s_cmp_ge_u32 s2, 256")
    P.ins("s_cbranch_scc1 A_end")
    P.ins("s_load_dwordx4 s[4:7], s[0:1], 0")
    P.ins("s_load_dwordx4 s[8:11], s[0:1], 16")
    P.ins("s_load_dwordx2 s[12:13], s[0:1], 56")
    P.ins("s_load_dwordx2 s[52:53], s[0:1], 32")
    P.ins("s_load_dwordx4 s[96:99], s[0:1], 48")
    P.ins("s_load_dwordx2 s[100:101], s[0:1], 40")
    if STAMP:
        P.ins("s_memrealtime s[58:59]")
        for i in range(30): P.ins("s_mov_b32 s%d, 0" % (64 + i))
    P.ins("s_and_b32 s14, s2, 7")
    P.ins("s_lshl_b32 s14, s14, 2")
    P.ins("s_bfe_u32 s15, s2, 0x20003")
    P.ins("s_add_u32 s14, s14, s15")
    P.ins("s_lshr_b32 s15, s2, 5")
    P.ins("v_lshrrev_b32 v1, 6, v0")
    P.ins("v_and_b32 v0, 63, v0")
    P.ins("s_nop 0")
    P.ins("v_readfirstlane_b32 s16, v1")
    P.ins("s_lshl_b32 s17, s15, 5")
    P.ins("s_add_u32 s17, s17, s14")
    P.ins("s_mul_i32 s41, s17, 24576")
    P.ins("s_lshl_b32 s17, s17, 17")
    P.ins("s_mul_i32 s18, s15, 122880")
    P.ins("s_lshl_b32 s19, s14, 8")
    P.ins("s_and_b32 s42, s2, 7")
    P.ins("s_mul_i32 s42, s42, 655360")
    P.ins("s_and_b32 s43, s14, 3")
    P.ins("s_mul_i32 s43, s43, 320")
    P.ins("s_add_u32 s42, s42, s43")
    P.ins("s_waitcnt lgkmcnt(0)")
    stamp_setup(P, 12, 13, 0)
    P.ins("s_add_u32 s52, s52, s42"); P.ins("s_addc_u32 s53, s53, 0")
    P.ins("s_sub_u32 s42, 5242880, s42")
    srd(P, 48, 52, 53, "s42")
    P.ins("s_add_u32 s4, s4, s18"); P.ins("s_addc_u32 s5, s5, 0")
    srd(P, 20, 4, 5, 122880)
    P.ins("s_add_u32 s6, s6, s17"); P.ins("s_addc_u32 s7, s7, 0")
    srd(P, 24, 6, 7, 131072)
    P.ins("s_add_u32 s8, s8, s17"); P.ins("s_addc_u32 s9, s9, 0")
    srd(P, 28, 8, 9, 131072)
    P.ins("s_add_u32 s10, s10, s19"); P.ins("s_addc_u32 s11, s11, 0")
    P.ins("s_sub_u32 s42, 5242880, s19")
    srd(P, 32, 10, 11, "s42")
    P.ins("s_add_u32 s12, s12, s41"); P.ins("s_addc_u32 s13, s13, 0")
    srd(P, 36, 12, 13, 24576)
    P.ins("s_cmp_eq_u32 s16, 3")
    P.ins("s_cbranch_scc1 A_loader")
    pre = P.text()
    comp = gen_compute()
    load = gen_loader()
    return pre + comp + load + gen_final() + "A_end:\n    s_endpgm\n"

AK = 1
AV = 9
VO = 13
VM = 14
VL0 = 15; VL1 = 16
VMC = 17
VT = 18
QF = 24
SB = 56
TMP = 248
XF = 24
QACC = 184
AS = 0
AO = 64
AF = 128

def Sreg(kb, r=0, n=16):
    if kb < 12: return vr(SB + 16 * kb + r, n)
    return ar(AS + 16 * (kb - 12) + r, n)

def gen_compute():
    P = Prog()
    tags = {}
    ST = Stamper(); ST.stamp(P)
    P.ins("v_and_b32 v18, 31, v0")
    P.ins("v_lshrrev_b32 v19, 5, v0")
    P.ins("v_lshrrev_b32 v20, 4, v0")
    P.ins("v_and_b32 v21, 15, v0")
    P.ins("s_lshl_b32 s40, s16, 5")
    P.ins("v_add_u32 v22, s40, v18")
    P.ins("v_lshlrev_b32 v%d, 13, v22" % VO)
    P.ins("v_lshl_add_u32 v%d, v19, 4, v%d" % (VO, VO))
    P.ins("v_lshlrev_b32 v249, 2, v20")
    P.ins("v_xor_b32 v249, v21, v249")
    P.ins("v_lshlrev_b32 v249, 4, v249")
    P.ins("v_lshl_add_u32 v248, v20, 13, v249")
    def wtile(T):
        if T is None:
            P.ins("s_lshl_b32 m0, s46, 13")
            P.ins("s_add_u32 s40, s46, s45")
            P.ins("s_cmp_ge_u32 s40, 20")
            P.ins("s_cselect_b32 s41, 20, 0")
            P.ins("s_sub_u32 s40, s40, s41")
            P.ins("s_lshl_b32 s40, s40, 18")
            P.ins("s_add_u32 s46, s46, 1")
        else:
            P.ins("s_mov_b32 m0, %d" % (T * 8192))
            P.ins("s_mov_b32 s40, %d" % (T * 32 * 8192))
        for i in range(8):
            P.vm("buffer_load_dwordx4 v248, s[32:35], s40 offen lds")
            if i < 7:
                P.ins("s_add_u32 m0, m0, 1024")
                P.ins("s_add_u32 s40, s40, 32768")
    P.ins("s_and_b32 s43, s14, 3")
    P.ins("s_add_u32 s43, s43, s15")
    for _ in range(2):
        P.ins("s_cmp_ge_u32 s43, 5")
        P.ins("s_cselect_b32 s40, 5, 0")
        P.ins("s_sub_u32 s43, s43, s40")
    P.ins("s_lshl_b32 s45, s43, 2")
    P.ins("s_lshl_b32 s40, s16, 5")
    for j in range(4):
        P.ins("v_add_u32 v249, %d, v20" % (4 * j))
        P.ins("v_xor_b32 v254, v249, v21")
        P.ins("v_add_u32 v249, s40, v249")
        P.ins("v_mul_u32_u24 v249, 1280, v249")
        P.ins("v_lshl_add_u32 v%d, v254, 4, v249" % (250 + j))
    P.ins("s_add_u32 s47, s16, 1")
    P.ins("s_mul_i32 s47, s47, 40960")
    P.ins("s_mov_b32 m0, s47")
    P.ins("s_lshl_b32 s40, s43, 8")
    ST.stamp(P)
    for c in range(5):
        for i in range(8):
            if i == 4: P.ins("s_add_u32 s41, s40, 20480")
            if 'x' not in PX:
                P.vm("buffer_load_dwordx4 v%d, s[20:23], %s offen lds" % (250 + (i & 3), "s40" if i < 4 else "s41"))
            if not (c == 4 and i == 7): P.ins("s_add_u32 m0, m0, 1024")
        if c < 4:
            P.ins("s_add_u32 s40, s40, 256")
            P.ins("s_cmp_ge_u32 s40, 1280")
            P.ins("s_cselect_b32 s41, 1280, 0")
            P.ins("s_sub_u32 s40, s40, s41")
    ST.stamp(P)
    P.ins("s_mov_b32 s46, s16")
    if 'w' not in PX: wtile(None)
    P.ins("s_add_u32 s46, s16, 3")
    P.ins("s_cmp_eq_u32 s16, 2")
    P.ins("s_cselect_b32 s46, 2, s46")
    if 'w' not in PX: wtile(None)
    ST.stamp(P)
    P.ins("v_and_b32 v249, 1, v0")
    P.ins("v_bfe_u32 v250, v0, 1, 1")
    P.ins("v_lshrrev_b32 v251, 2, v21")
    P.ins("v_and_b32 v252, 1, v20")
    P.ins("v_lshl_or_b32 v252, v252, 1, v249")
    P.ins("v_lshlrev_b32 v252, 4, v252")
    P.ins("v_lshl_add_u32 v252, v250, 3, v252")
    P.ins("v_lshrrev_b32 v253, 1, v20")
    P.ins("v_lshl_add_u32 v254, v253, 3, v251")
    P.ins("v_lshl_add_u32 v254, v254, 8, v252")
    P.ins("v_lshl_add_u32 v255, v253, 2, v251")
    P.ins("v_lshl_add_u32 v255, v255, 8, v252")
    for db in range(4):
        P.ins("v_xor_b32 v249, %d, v251" % db)
        P.ins("v_lshl_add_u32 v%d, v249, 6, v254" % (AV + db))
    P.ins("v_mov_b32 v16, v255")
    P.ins("v_mov_b32 v17, v251")
    for s in range(8):
        P.ins("v_add_u32 v249, %d, v19" % (2 * s))
        P.ins("v_xor_b32 v249, v249, v21")
        P.ins("v_lshlrev_b32 v249, 4, v249")
        P.ins("v_lshl_add_u32 v%d, v18, 8, v249" % (AK + s))
    P.ins("s_mov_b32 s44, 0x%x" % f32bits(SC))
    ST.stamp(P)
    for s in range(8): P.ins("v_add_u32 v%d, s47, v%d" % (AK + s, AK + s))
    for c in range(5):
        P.ins("s_waitcnt vmcnt(%d)" % (16 + 32 - 8 * c))
        for s in range(8):
            P.ds("ds_read_b128 %s, v%d offset:%d" % (vr(XF + 4 * (8 * c + s), 4), AK + s, c * 8192))
    P.wait_ds_all()
    for s in range(8): P.ins("v_subrev_u32 v%d, s47, v%d" % (AK + s, AK + s))
    ST.stamp(P)
    if B0E:
        P.ins("s_waitcnt vmcnt(0)")
        P.ins("s_barrier")
    P.ins("s_mul_i32 s46, s16, 5")
    P.ins("s_add_u32 s46, s46, 5")
    for n in range(5): wtile(None)
    if not B0E:
        P.ins("s_waitcnt vmcnt(40)")
        P.ins("s_barrier")
    ST.stamp(P)
    def wreads(t):
        its = []
        buf = t % 2
        if t in (8, 16):
            for db in range(4):
                its.append(Item("v_add_u32 v%d, 0x10000, v%d" % (AV + db, AV + db)))
        for ks2 in range(2):
            for db in range(4):
                for r2 in range(2):
                    its.append(Item("ds_read_b64_tr_b16 %s, v%d offset:%d" % (
                        ar(AF + 32 * buf + (ks2 * 4 + db) * 4 + 2 * r2, 2), AV + db,
                        (t % 8) * 8192 + ks2 * 4096 + r2 * 1024), 'ds', tag=('w', t, ks2, db)))
        return its
    def wmfma(t):
        its = []
        buf = t % 2
        for ks2 in range(2):
            for db in range(4):
                c = "0" if (t == 0 and ks2 == 0) else vr(QACC + 16 * db, 16)
                its.append(Item("v_mfma_f32_32x32x16_bf16 %s, %s, %s, %s" % (
                    vr(QACC + 16 * db, 16), ar(AF + 32 * buf + (ks2 * 4 + db) * 4, 4),
                    vr(XF + 4 * (2 * t + ks2), 4), c), need=[('w', t, ks2, db)]))
        return its
    def qbar():
        P.wait_vm_all()
        P.wait_ds_all()
        P.ins("s_barrier")
    emit(P, wreads(0), tags)
    for t in range(20):
        mf = wmfma(t)
        rd = wreads(t + 1) if t < 19 else []
        bnd = (t + 1) in (5, 20)
        g0 = 3 if bnd else 0
        seq = []
        per = (len(rd) + 3) // 4
        for n, m in enumerate(mf):
            seq.append(m)
            if bnd and n == g0 - 1: seq.append(qbar)
            if g0 <= n < g0 + 4: seq += rd[per * (n - g0):per * (n - g0 + 1)]
        emit(P, seq, tags)
    for db in range(4):
        P.ins("v_xor_b32 v249, %d, v17" % db)
        P.ins("v_lshl_add_u32 v%d, v249, 6, v16" % (AV + db))
        P.ins("v_add_u32 v%d, 0x%x, v%d" % (AV + db, 131072, AV + db))
    P.ins("v_mov_b32 v%d, 0xff800000" % VM)
    for s in range(8):
        for p in range(4):
            a = QACC + 16 * (s >> 1) + 8 * (s & 1) + 2 * p
            P.ins("v_cvt_pk_bf16_f32 v%d, v%d, v%d" % (QF + 4 * s + p, a, a + 1))
    ST.stamp(P)
    VMCE = 248; VLE = 250
    VMCL = 24; VLL = 26
    VM2 = 15; VC = 16
    AO2 = 192
    P.ins("s_mov_b32 s45, s44")
    P.ins("v_mov_b32 v%d, 0xff800000" % VM2)
    def kreads(kb):
        its = []
        for s in range(8):
            its.append(Item("ds_read_b128 %s, v%d offset:%d" % (ar(AF + 32 * (kb % 2) + 4 * s, 4), AK + s, (kb % 8) * 8192),
                            'ds', tag=('k', kb, s)))
        return its
    def smfma(kb):
        its = []
        for s in range(8):
            c = "0" if s == 0 else Sreg(kb)
            its.append(Item("v_mfma_f32_32x32x16_bf16 %s, %s, %s, %s" % (
                Sreg(kb), ar(AF + 32 * (kb % 2) + 4 * s, 4), vr(QF + 4 * s, 4), c), need=[('k', kb, s)]))
        return its
    def maxops(kb):
        its = []
        M = VM if kb < 8 else VM2
        for p in range(8):
            if kb < 12:
                a = SB + 16 * kb + 2 * p
                its.append(Item("v_max3_f32 v%d, v%d, v%d, v%d" % (M, a, a + 1, M)))
            else:
                a = AS + 16 * (kb - 12) + 2 * p
                t0 = 252 + 2 * (p % 2)
                its.append(Item("v_accvgpr_read_b32 v%d, a%d" % (t0, a)))
                its.append(Item("v_accvgpr_read_b32 v%d, a%d" % (t0 + 1, a + 1)))
                its.append(Item("v_max3_f32 v%d, v%d, v%d, v%d" % (M, t0, t0 + 1, M)))
        return its
    def xmax(M):
        return [Item("v_mov_b32 v%d, v%d" % (VT, M)), Item("v_mov_b32 v%d, v%d" % (VT + 1, M)),
                Item("v_permlane32_swap_b32 v%d, v%d" % (VT, VT + 1)),
                Item("v_max_f32 v%d, v%d, v%d" % (M, VT, VT + 1))]
    def barrier():
        P.wait_ds_all()
        P.ins("s_barrier")
    def Preg(kk):
        kb = kk >> 1; u = kk & 1
        if kb < 12: return SB + 16 * kb + 4 * u
        i2 = 2 * (kb - 12) + u
        return SB + 16 * i2 + 8
    def eops(kb):
        its = []
        MC, L = (VMCE, VLE) if kb < 8 else (VMCL, VLL)
        if kb < 12:
            regs = [SB + 16 * kb + r for r in range(16)]
        else:
            regs = [SB + 16 * (2 * (kb - 12) + (r >> 3)) + 8 + (r & 7) for r in range(16)]
        def dst(p):
            if kb < 12: return SB + 16 * kb + p
            return SB + 16 * (2 * (kb - 12) + (p >> 2)) + 8 + (p & 3)
        for p in range(11):
            if p < 8:
                a = regs[2 * p]
                if kb >= 12:
                    its.append(Item("v_accvgpr_read_b32 v%d, a%d" % (a, AS + 16 * (kb - 12) + 2 * p)))
                    its.append(Item("v_accvgpr_read_b32 v%d, a%d" % (a + 1, AS + 16 * (kb - 12) + 2 * p + 1)))
                if PKF & 1:
                    its.append(Item("v_pk_fma_f32 %s, %s, s[44:45], %s neg_lo:[0,0,1] neg_hi:[0,0,1]" % (vr(a, 2), vr(a, 2), vr(MC, 2))))
                else:
                    its.append(Item("v_fma_f32 v%d, v%d, s44, -v%d" % (a, a, MC)))
                    its.append(Item("v_fma_f32 v%d, v%d, s44, -v%d" % (a + 1, a + 1, MC)))
            if 0 <= p - 1 < 8:
                a = regs[2 * (p - 1)]
                its.append(Item("v_exp_f32 v%d, v%d" % (a, a)))
                its.append(Item("v_exp_f32 v%d, v%d" % (a + 1, a + 1)))
            if 0 <= p - 2 < 8:
                a = regs[2 * (p - 2)]
                if PKF & 2:
                    its.append(Item("v_pk_add_f32 %s, %s, %s" % (vr(L, 2), vr(L, 2), vr(a, 2))))
                else:
                    its.append(Item("v_add_f32 v%d, v%d, v%d" % (L, L, a)))
                    its.append(Item("v_add_f32 v%d, v%d, v%d" % (L + 1, L + 1, a + 1)))
            if 0 <= p - 3 < 8:
                q = p - 3
                its.append(Item("v_cvt_pk_bf16_f32 v%d, v%d, v%d" % (dst(q), regs[2 * q], regs[2 * q + 1])))
        return its
    barrier()
    emit(P, kreads(0), tags)
    for kb in range(16):
        mf = smfma(kb)
        seq = []
        nxt = kb + 1
        pre_items = []
        if nxt < 16:
            if nxt in (2, 6, 10, 14):
                pre_items.append(barrier)
            if nxt == 8:
                for s in range(8):
                    pre_items.append(Item("v_add_u32 v%d, 0x10000, v%d" % (AK + s, AK + s)))
            rd = kreads(nxt)
        else:
            rd = []
        fill = maxops(kb - 1) if kb >= 1 else []
        if kb == 8:
            fill += xmax(VM) + [Item("v_mul_f32 v%d, s44, v%d" % (VMCE, VM)), Item("v_mul_f32 v%d, s44, v%d" % (VMCE + 1, VM)),
                                Item("v_mov_b32 v%d, 0" % VLE), Item("v_mov_b32 v%d, 0" % (VLE + 1))]
        if kb >= 9: fill += eops(kb - 9)
        seq += pre_items
        for n, m in enumerate(mf):
            seq.append(m)
            if n < 4: seq += rd[2 * n:2 * n + 2]
            if n >= 2:
                k0 = (len(fill) * (n - 2)) // 6; k1 = (len(fill) * (n - 1)) // 6
                seq += fill[k0:k1]
        emit(P, seq, tags)
    e7 = eops(7)
    emit(P, e7[:12] + maxops(15) + e7[12:] + xmax(VM2), tags)
    P.ins("v_max_f32 v%d, v%d, v%d" % (VM2, VM, VM2))
    P.ins("v_mul_f32 v%d, s44, v%d" % (VMCL, VM2))
    P.ins("v_mul_f32 v%d, s44, v%d" % (VMCL + 1, VM2))
    P.ins("v_sub_f32 v%d, v%d, v%d" % (VC, VMCE, VMCL))
    P.ins("v_exp_f32 v%d, v%d" % (VC, VC))
    P.ins("v_mov_b32 v%d, 0" % VLL)
    P.ins("v_mov_b32 v%d, 0" % (VLL + 1))
    ST.stamp(P)
    def vbase(j): return (j - 2) * 16384 if j >= 2 else 131072 + j * 16384
    def vreads(kk):
        its = []
        for db in range(4):
            for r2 in range(2):
                its.append(Item("ds_read_b64_tr_b16 %s, v%d offset:%d" % (
                    ar(AF + 16 * (kk % 4) + 4 * db + 2 * r2, 2), AV + db, (kk & 3) * 4096 + r2 * 2048),
                    'ds', tag=('v', kk, db)))
        return its
    def pmfma(kk):
        its = []
        A = AO if kk < 16 else AO2
        for db in range(4):
            c = "0" if kk in (0, 16) else ar(A + 16 * db, 16)
            its.append(Item("v_mfma_f32_32x32x16_bf16 %s, %s, %s, %s" % (
                ar(A + 16 * db, 16), ar(AF + 16 * (kk % 4) + 4 * db, 4), vr(Preg(kk), 4), c), need=[('v', kk, db)]))
        return its
    def pbar(j):
        def f():
            if j not in (1, 3): P.ins("s_barrier")
            if j > 0:
                d = vbase(j) - vbase(j - 1)
                for db in range(4):
                    P.ins("v_add_u32 v%d, 0x%x, v%d" % (AV + db, d & 0xffffffff, AV + db))
        return f
    ework = []
    for kb in range(8, 16): ework += [(kb, it) for it in eops(kb)]
    emit(P, [pbar(0)] + vreads(0) + vreads(1), tags)
    epos = 0
    acc = 0.0
    blk_len = len(eops(8))
    OF = SB + 128
    def T(db, r): return SB + 16 * (2 * db + (r >> 3)) + (r & 7)
    class Rec:
        def __init__(self): self.its = []
        def ins(self, t): self.its.append(Item(t))
    R = Rec()
    R.ins("v_add_f32 v%d, v%d, v%d" % (VLE, VLE, VLE + 1))
    R.ins("v_add_f32 v%d, v%d, v%d" % (VLL, VLL, VLL + 1))
    R.ins("v_fma_f32 v%d, v%d, v%d, v%d" % (VLE, VLE, VC, VLL))
    R.ins("v_mov_b32 v%d, v%d" % (VT, VLE))
    R.ins("v_mov_b32 v%d, v%d" % (VT + 1, VLE))
    R.ins("v_permlane32_swap_b32 v%d, v%d" % (VT, VT + 1))
    R.ins("v_add_f32 v%d, v%d, v%d" % (VLE, VT, VT + 1))
    R.ins("v_rcp_f32 v%d, v%d" % (VLL, VLE))
    R.ins("v_mul_f32 v%d, v%d, v%d" % (VC, VC, VLL))
    R.ins("v_mov_b32 v%d, v%d" % (VLL + 1, VLL))
    R.ins("v_mov_b32 v%d, v%d" % (VLE, VC))
    R.ins("v_mov_b32 v%d, v%d" % (VLE + 1, VC))
    R.ins("s_lshl_b32 s40, s16, 13")
    R.ins("s_add_u32 s41, s40, 4096")
    R.ins("v_lshlrev_b32 v%d, 4, v0" % VO)
    for db in range(4):
        for r in range(16):
            R.ins("v_accvgpr_read_b32 v%d, a%d" % (T(db, r), AO + 16 * db + r))
        for p in range(8):
            R.ins("v_pk_mul_f32 %s, %s, %s" % (vr(T(db, 2 * p), 2), vr(T(db, 2 * p), 2), vr(VLE, 2)))
    R.ins("v_and_b32 v6, 1, v0")
    R.ins("v_bfe_u32 v7, v0, 1, 1")
    R.ins("v_bfe_u32 v8, v0, 2, 2")
    R.ins("v_bfe_u32 v5, v0, 4, 1")
    R.ins("v_lshl_or_b32 v5, v5, 1, v6")
    R.ins("v_lshlrev_b32 v5, 4, v5")
    R.ins("v_lshl_add_u32 v5, v7, 3, v5")
    R.ins("v_lshrrev_b32 v4, 5, v0")
    R.ins("v_lshl_add_u32 v4, v4, 3, v8")
    R.ins("v_mul_u32_u24 v4, 320, v4")
    R.ins("v_add_u32 v1, v4, v5")
    R.ins("v_add_u32 v2, 61440, v1")
    R.ins("v_add_u32 v3, 122880, v1")
    R.ins("v_add_u32 v4, s40, v%d" % VO)
    R.ins("s_and_b32 s42, s14, 28")
    R.ins("s_lshl_b32 s43, s15, 5")
    R.ins("s_add_u32 s42, s42, s43")
    R.ins("s_mul_i32 s42, s42, 24576")
    R.ins("s_add_u32 s4, s98, s42"); R.ins("s_addc_u32 s5, s99, 0")
    srd(R, 24, 4, 5, 98304)
    part_srd(R)
    isb = lambda it, n: n < 12 or it.t.startswith("v_pk_mul")
    early_b = [it for n, it in enumerate(R.its) if isb(it, n)]
    early_a = [it for n, it in enumerate(R.its) if not isb(it, n)]
    def late(db):
        its = []
        U = 216 + 16 * (db & 1)
        ob = OF + 8 * db
        for u in range(2):
            for r in range(8 * u, 8 * u + 8):
                its.append(Item("v_accvgpr_read_b32 v%d, a%d" % (U + r, AO2 + 16 * db + r)))
            for p in range(4 * u, 4 * u + 4):
                its.append(Item("v_pk_fma_f32 %s, %s, %s, %s" % (vr(T(db, 2 * p), 2), vr(U + 2 * p, 2), vr(VLL, 2), vr(T(db, 2 * p), 2))))
            for p in range(4 * u, 4 * u + 4):
                its.append(Item("v_cvt_pk_bf16_f32 v%d, v%d, v%d" % (ob + p, T(db, 2 * p), T(db, 2 * p) + 1)))
            sidx = 2 * db + u
            its.append(Item("buffer_store_dwordx4 %s, v%d, s[36:39], %s offen offset:%d sc1" % (
                vr(ob + 4 * u, 4), VO, "s40" if sidx < 4 else "s41", (sidx & 3) * 1024), 'vm'))
        return its
    ERATE = float(os.environ.get("ERATE", "0.46"))
    A0, A1 = 16, 22
    E0, E1 = 22, 26
    for kk in range(28):
        mf = pmfma(kk)
        fill = []
        acc += ERATE * blk_len
        tgt = int(acc)
        must = (kk + 1) >> 1
        while epos < len(ework) and (epos < tgt or ework[epos][0] <= must):
            fill.append(ework[epos][1]); epos += 1
        if A0 <= kk < A1:
            fill += early_a[(len(early_a) * (kk - A0)) // (A1 - A0):(len(early_a) * (kk - A0 + 1)) // (A1 - A0)]
        if E0 <= kk < E1:
            assert epos == len(ework)
            fill += early_b[(len(early_b) * (kk - E0)) // (E1 - E0):(len(early_b) * (kk - E0 + 1)) // (E1 - E0)]
        pre_items = []
        rd = []
        n2 = kk + 2
        if n2 < 32:
            if n2 % 4 == 0: pre_items.append(pbar(n2 // 4))
            rd = vreads(n2)
        seq = list(pre_items)
        fl = rd + fill
        seq += interleave(mf, fl)
        emit(P, seq, tags)
        if kk % 8 == 7: ST.stamp(P)
    r30 = vreads(30); r31 = vreads(31)
    seq = []
    for db in range(4): seq += r30[2 * db:2 * db + 2] + r31[2 * db:2 * db + 2]
    mfs = [pmfma(kk) for kk in range(28, 32)]
    for db in range(4):
        m4 = [mfs[k][db] for k in range(4)]
        fl = late(db - 1) if db > 0 else []
        seq += [m4[0]] + interleave(m4[1:], fl)
    seq += late(3)
    emit(P, seq, tags)
    ST.stamp(P)
    P.ins("s_barrier")
    ST.stamp(P)
    ACC = [24, 40, 152, 168, 216]; PK = 232
    KM = int(os.environ.get("KM", "16")); DD = int(os.environ.get("DD", "6")); RING = 12
    ops = [(n, cb) for n in range(KM) for cb in range(5)]
    groups = [(0, 1), (2, 3), (4,)]
    gend = {}
    for g in groups:
        ops += [(n, cb) for n in range(KM, 32) for cb in g]
        gend[len(ops) - 1] = g
    def bread(i):
        n, cb = ops[i]
        pos = (20 + n) & 31
        return [Item("ds_read_b64_tr_b16 %s, v%d offset:%d" % (
                    ar(AF + 4 * (i % RING) + 2 * r2, 2), 1 + pos // 12,
                    (pos % 12) * 5120 + r2 * 1280 + cb * 64), 'ds', tag=('b', i)) for r2 in range(2)]
    def bmfma(i):
        n, cb = ops[i]
        bf = vr(OF + 4 * n, 4) if n < 8 else vr(SB + 4 * (n - 8), 4)
        c = "0" if n == 0 else vr(ACC[cb], 16)
        return Item("v_mfma_f32_32x32x16_bf16 %s, %s, %s, %s" % (
                vr(ACC[cb], 16), ar(AF + 4 * (i % RING), 4), bf, c),
                need=[('b', i)], needvm=[('o', n)] if n >= 8 else ())
    oq = []
    for i in range(1, 4):
        sa, sb = ("s42", "s43") if i & 1 else ("s44", "s45")
        oq.append([Item("s_add_u32 %s, s14, %d" % (sa, i)), Item("s_and_b32 %s, %s, 3" % (sa, sa)),
                   Item("s_mul_i32 %s, %s, 24576" % (sa, sa)), Item("s_add_u32 %s, %s, 4096" % (sb, sa))])
        for s_ in range(8):
            n = 8 * i + s_
            it = Item("buffer_load_dwordx4 %s, v4, s[24:27], %s offen offset:%d" % (
                vr(SB + 4 * (n - 8), 4), sa if s_ < 4 else sb, (s_ & 3) * 1024), 'vm', tag=('o', n))
            if s_ == 0: oq[-1].append(it)
            else: oq.append([it])
    def pstores(cb):
        pk = PK + 8 * (cb & 1)
        its = []
        for u in range(2):
            for p in range(4):
                its.append(Item("v_cvt_pk_bf16_f32 v%d, v%d, v%d" % (pk + 4 * u + p, ACC[cb] + 8 * u + 2 * p, ACC[cb] + 8 * u + 2 * p + 1)))
            its.append(Item("buffer_store_dwordx4 %s, v%d, s[28:31], %s offen offset:%d sc1" % (
                vr(pk + 4 * u, 4), VO, ("s46", "s47", "s40")[cb >> 1], ((2 * cb + u) & 3) * 1024), 'vm'))
        return its
    P.ins("s_and_b32 s46, s2, 7")
    P.ins("s_mul_i32 s46, s46, 30720")
    P.ins("s_mul_i32 s47, s16, 10240")
    P.ins("s_add_u32 s46, s46, s47")
    P.ins("s_add_u32 s47, s46, 4096")
    P.ins("s_add_u32 s40, s46, 8192")
    NOWN = int(os.environ.get("NOWN", "40"))
    for i in range(DD): emit(P, bread(i), tags)
    rdn = DD
    pend = []; hold = 0
    for i in range(len(ops)):
        if i == NOWN:
            P.wait_vm_all()
            P.ins("s_barrier")
            ST.stamp(P)
            P.ins("s_barrier")
            ST.stamp(P)
            seq = []
            for _ in range(24 if NOWN == 40 else max(4, 24 - OIL * (40 - NOWN))): seq += oq.pop(0)
            while rdn < i + DD: seq += bread(rdn); rdn += 1
            emit(P, seq, tags)
        seq = [bmfma(i)]
        if rdn < len(ops) and (rdn < 40 or i >= NOWN): seq += bread(rdn); rdn += 1
        if i >= NOWN:
            for _ in range(OIL):
                if oq: seq += oq.pop(0)
        if hold > 0: hold -= 1
        else:
            seq += pend[:3]; pend = pend[3:]
        if i in gend:
            for cb in gend[i]: pend += pstores(cb)
            hold = 1
        emit(P, seq, tags)
        if i in (39, 79, 111, 143): ST.stamp(P)
    emit(P, pend, tags)
    ST.stamp(P)
    P.wait_vm_all()
    ST.stamp(P)
    P.ins("s_barrier")
    P.ins("s_barrier")
    ST.stamp(P)
    P.ins("s_branch R_start")
    return P.text()

def part_srd(P):
    P.ins("s_and_b32 s42, s14, 3")
    P.ins("s_lshl_b32 s43, s15, 2")
    P.ins("s_add_u32 s42, s42, s43")
    P.ins("s_mul_i32 s42, s42, 245760")
    P.ins("s_add_u32 s42, s42, 0x2000000")
    P.ins("s_add_u32 s6, s98, s42"); P.ins("s_addc_u32 s7, s99, 0")
    srd(P, 28, 6, 7, 245760)

def gen_loader():
    P = Prog()
    P.label("A_loader")
    tags = {}
    ST = Stamper(); ST.stamp(P)
    P.ins("v_lshrrev_b32 v1, 4, v0")
    P.ins("v_and_b32 v2, 15, v0")
    P.ins("v_lshlrev_b32 v8, 4, v0")
    def vstage(bf, i):
        n = bf * 16 + i
        if n < 58: return vr(24 + 4 * n, 4)
        return ar(4 * (n - 58), 4)
    bufof = {}
    def toreg(n, bf):
        bufof[n] = bf
        sr = "s[24:27]" if n < 8 else "s[28:31]"
        for g in range(4):
            P.wait_vm(P.vm_issued - (LIM - 4))
            P.ins("s_mov_b32 s40, %d" % ((n % 8) * 16384 + g * 4096))
            for i in range(4):
                tags[n] = P.vm("buffer_load_dwordx4 %s, v8, %s, s40 offen offset:%d nt" % (vstage(bf, 4 * g + i), sr, i * 1024))
    for i in range(4):
        P.ins("v_add_u32 v3, %d, v1" % (4 * i))
        P.ins("v_xor_b32 v3, v3, v2")
        P.ins("v_lshlrev_b32 v3, 4, v3")
        P.ins("v_lshl_add_u32 v%d, v1, 8, v3" % (4 + i))
        P.ins("v_add_u32 v%d, 0x10000, v%d" % (12 + i, 4 + i))
    P.ins("v_lshlrev_b32 v3, 2, v1")
    P.ins("v_xor_b32 v3, v3, v2")
    P.ins("v_lshlrev_b32 v3, 4, v3")
    P.ins("v_lshl_add_u32 v9, v1, 8, v3")
    P.ins("v_add_u32 v10, 0x20000, v9")
    LST = int(os.environ.get("LST", "0"))
    def dump(n):
        if LST: ST.stamp(P)
        P.wait_vm(tags[n])
        if LST: ST.stamp(P)
        bf = bufof[n]
        for i in range(16):
            if n < 8:
                a = (4 if n < 4 else 12) + (i & 3)
                P.ds("ds_write_b128 v%d, %s offset:%d" % (a, vstage(bf, i), (n % 4) * 16384 + i * 1024))
            elif n < 10:
                P.ds("ds_write_b128 v10, %s offset:%d" % (vstage(bf, i), (n - 8) * 16384 + i * 1024))
            else:
                P.ds("ds_write_b128 v9, %s offset:%d" % (vstage(bf, i), (n - 10) * 16384 + i * 1024))
        P.wait_ds_all()
    def vdma(j):
        for g in range(4):
            P.wait_vm(P.vm_issued - (LIM2 - 4))
            P.ins("s_mov_b32 m0, %d" % ((j - 2) * 16384 + g * 4096))
            P.ins("s_mov_b32 s40, %d" % (j * 16384 + g * 4096))
            for i in range(4):
                tags[8 + j] = P.vm("buffer_load_dwordx4 v9, s[28:31], s40 offen offset:%d nt lds" % (i * 1024))
    def bar():
        P.ins("s_barrier")
        if not LST: ST.stamp(P)
    srd(P, 32, 96, 97, 256)
    P.ins("s_add_u32 s4, s98, 0x3000000"); P.ins("s_addc_u32 s5, s99, 0")
    srd(P, 20, 4, 5, 0x20000)
    P.ins("s_and_b32 s40, s2, 7")
    P.ins("s_and_b32 s41, s14, 3")
    P.ins("s_lshl_b32 s42, s15, 3")
    P.ins("s_add_u32 s42, s42, s40")
    P.ins("s_lshl_b32 s36, s42, 8")
    P.ins("s_lshl_b32 s42, s15, 2")
    P.ins("s_add_u32 s42, s42, s41")
    P.ins("s_lshl_b32 s42, s42, 8")
    P.ins("s_add_u32 s37, s42, 0x10000")
    P.ins("s_lshl_b32 s41, s41, 2")
    P.ins("s_add_u32 s38, s36, s41")
    P.ins("s_lshl_b32 s40, s40, 2")
    P.ins("s_add_u32 s39, s37, s40")
    if int(os.environ.get("IPF", "0")):
        P.ins("s_getpc_b64 s[4:5]")
        P.label("L_pc")
        P.ins("s_sub_u32 s4, s4, L_pc-%s" % KNAME)
        P.ins("s_subb_u32 s5, s5, 0")
        P.ins("s_lshr_b32 s6, s2, 3")
        P.ins("s_and_b32 s6, s6, 7")
        P.ins("s_cmp_ge_u32 s6, 6")
        P.ins("s_cselect_b32 s6, 0, s6")
        P.ins("s_lshl_b32 s6, s6, 13")
        P.ins("v_lshlrev_b32 v20, 7, v0")
        P.ins("v_add_u32 v20, s6, v20")
        P.ins("v_min_u32 v20, A_end-%s, v20" % KNAME)
        P.vm("global_load_dword v11, v20, s[4:5]")
    P.ins("s_cmp_eq_u32 s2, 0")
    P.ins("s_cbranch_scc0 L_noclr")
    for r in range(4): P.ins("v_mov_b32 v%d, 0" % (16 + r))
    P.ins("v_lshlrev_b32 v20, 8, v0")
    P.ins("v_add_u32 v21, 0x10000, v20")
    P.ins("buffer_store_dwordx4 v[16:19], v20, s[20:23], 0 offen sc1")
    P.ins("buffer_store_dwordx4 v[16:19], v21, s[20:23], 0 offen sc1")
    P.ins("buffer_store_dwordx4 v[16:19], v21, s[20:23], 0 offen offset:16 sc1")
    P.ins("v_mov_b32 v17, 1")
    P.ins("s_waitcnt vmcnt(0)")
    P.ins("v_cmp_eq_u32 vcc, 0, v0")
    P.ins("s_and_saveexec_b64 s[18:19], vcc")
    P.ins("buffer_store_dword v17, v16, s[32:35], 0 offen sc1")
    P.ins("s_mov_b64 exec, s[18:19]")
    P.ins("s_waitcnt vmcnt(0)")
    P.label("L_noclr")
    if not LST: ST.stamp(P)
    global LIM
    sv = LIM; LIM = PLIM
    for n in range(PRE): toreg(n, n)
    LIM = sv
    bar()
    for n in range(PRE, PRE + 3): toreg(n, n)
    bar()
    for n in range(PRE + 3, 7): toreg(n, n)
    bar()
    dump(0); bar()
    dump(1); dump(2); bar()
    toreg(7, 0); dump(3); toreg(8, 1); dump(4); bar()
    toreg(9, 2); dump(5); toreg(10, 3); dump(6); bar()
    toreg(11, 4); dump(7); bar()
    toreg(12, 5); dump(8); toreg(13, 6); dump(9); bar()
    vdma(6); dump(10); vdma(7)
    for jj in range(5):
        P.ins("v_add_u32 v21, %d, v0" % (64 * jj))
        P.ins("v_mul_u32_u24 v22, 205, v21")
        P.ins("v_lshrrev_b32 v22, 12, v22")
        P.ins("v_mul_u32_u24 v23, 20, v22")
        P.ins("v_sub_u32 v21, v21, v23")
        P.ins("v_mul_u32_u24 v22, 1280, v22")
        P.ins("v_lshl_add_u32 v%d, v21, 4, v22" % (16 + jj))
    P.ins("s_and_b32 s45, s14, 3")
    P.ins("s_lshl_b32 s45, s45, 3")
    if WTOUCH:
        P.ins("s_lshl_b32 s40, s15, 2")
        P.ins("s_and_b32 s41, s14, 3")
        P.ins("s_add_u32 s40, s40, s41")
        P.ins("s_mul_i32 s40, s40, 20480")
        P.ins("s_mul_i32 s41, s41, 320")
        P.ins("s_sub_u32 s40, s40, s41")
        P.ins("v_lshlrev_b32 v21, 7, v0")
        P.ins("v_add_u32 v22, 8192, v21")
        P.ins("v_and_b32 v23, 31, v0")
        P.ins("v_lshlrev_b32 v23, 7, v23")
        P.ins("v_add_u32 v23, 16384, v23")
        for n in range(3):
            P.vm("buffer_load_dword v11, v%d, s[48:51], s40 offen" % (21 + n))
    def wog(pos):
        P.wait_vm(P.vm_issued - 55)
        P.ins("s_add_u32 s40, s45, %d" % ((pos - 20) & 31))
        P.ins("s_and_b32 s40, s40, 31")
        P.ins("s_mul_i32 s40, s40, 20480")
        for jj in range(5):
            P.ins("s_mov_b32 m0, %d" % (pos * 5120 + jj * 1024))
            tags[('wo', pos)] = P.vm("buffer_load_dwordx4 v%d, s[48:51], s40 offen lds" % (16 + jj))
    P.ins("s_load_dword s47, s[96:97], 0")
    dump(11); bar()
    dump(12); bar()
    wog(20); wog(21)
    dump(13); bar()
    wog(22); wog(23); wog(24)
    P.wait_vm(tags[14]); bar()
    wog(25); wog(26); wog(27)
    P.wait_vm(tags[15]); bar()
    NW7 = int(os.environ.get("NW7", "8"))
    rest = [28, 29, 30, 31] + list(range(20))
    for pos in rest[:NW7]: wog(pos)
    part_srd(P)
    P.wait_vm(tags[('wo', 27)])
    bar()
    for pos in rest[NW7:]: wog(pos)
    SLP = int(os.environ.get("SLP", "4"))
    P.ins("s_cmp_ge_u32 s47, 1")
    P.ins("s_cbranch_scc1 C_done")
    P.ins("v_mov_b32 v2, 0")
    P.ins("s_mov_b32 s56, 0")
    P.label("C_poll")
    P.ins("buffer_load_dword v1, v2, s[32:35], 0 offen sc1")
    P.ins("s_waitcnt vmcnt(0)")
    P.ins("v_readfirstlane_b32 s57, v1")
    P.ins("s_add_u32 s56, s56, 1")
    P.ins("s_cmp_ge_u32 s56, 0x40000")
    P.ins("s_cbranch_scc1 C_done")
    P.ins("s_cmp_ge_u32 s57, 1")
    P.ins("s_cbranch_scc1 C_done")
    P.ins("s_sleep 16")
    P.ins("s_branch C_poll")
    P.label("C_done")
    def sync(slot, line, msk, nm, pr):
        P.ins("v_mov_b32 v1, 1")
        P.ins("v_mov_b32 v3, 0")
        P.ins("v_and_b32 v2, %d, v0" % msk)
        P.ins("v_lshlrev_b32 v2, 2, v2")
        P.ins("v_cmp_eq_u32 vcc, 0, v0")
        bar()
        P.ins("s_and_saveexec_b64 s[18:19], vcc")
        P.ins("buffer_store_dword v1, v3, s[20:23], %s offen sc1" % slot)
        P.ins("s_mov_b64 exec, s[18:19]")
        P.ins("s_mov_b32 s46, 0")
        NPL = int(os.environ.get("NPL", "4"))
        for k in range(NPL):
            P.ins("buffer_load_dword v%d, v2, s[20:23], %s offen sc1" % (pr + k, line))
            if k < NPL - 1: P.ins("s_sleep %d" % SLP)
        P.label(nm + "_poll")
        for k in range(NPL):
            P.ins("s_waitcnt vmcnt(%d)" % (NPL - 1))
            P.ins("v_cmp_ne_u32 vcc, 1, v%d" % (pr + k))
            P.ins("s_nop 1")
            P.ins("s_cmp_eq_u64 vcc, 0")
            P.ins("s_cbranch_scc1 %s_done" % nm)
            P.ins("buffer_load_dword v%d, v2, s[20:23], %s offen sc1" % (pr + k, line))
        P.ins("s_add_u32 s46, s46, 1")
        P.ins("s_cmp_lt_u32 s46, 0x10000")
        P.ins("s_cbranch_scc1 %s_poll" % nm)
        P.label(nm + "_done")
        if not LST: ST.stamp(P)
        if INV:
            P.ins("buffer_inv sc1")
            P.ins("s_waitcnt vmcnt(0)")
        bar()
        P.vm_done = P.vm_issued
    sync("s38", "s36", 3, "S1", 100)
    sync("s39", "s37", 7, "S2", 110)
    return P.text()

def gen_final():
    P = Prog()
    P.label("R_start")
    P.ins("s_and_b32 s40, s2, 7")
    P.ins("s_lshl_b32 s40, s40, 2")
    P.ins("s_add_u32 s40, s40, s16")
    P.ins("s_cmp_ge_u32 s40, 30")
    P.ins("s_cbranch_scc1 %s" % ("R_dump" if STAMP else "A_end"))
    ST = Stamper(); ST.n = 28
    P.ins("v_lshlrev_b32 v1, 4, v0")
    P.ins("s_lshl_b32 s41, s40, 10")
    tg = []
    for p in range(8):
        tg.append(P.vm("buffer_load_dwordx4 %s, v1, s[28:31], s41 offen sc1" % vr(32 + 4 * p, 4)))
        if p < 7: P.ins("s_add_u32 s41, s41, 30720")
    P.ins("s_mul_i32 s42, s15, 122880")
    P.ins("s_and_b32 s43, s14, 3")
    P.ins("s_mul_i32 s43, s43, 320")
    P.ins("s_add_u32 s42, s42, s43")
    P.ins("s_add_u32 s4, s100, s42"); P.ins("s_addc_u32 s5, s101, 0")
    P.ins("s_sub_u32 s42, 983040, s42")
    srd(P, 20, 4, 5, "s42")
    P.ins("s_mul_i32 s42, s40, 26")
    P.ins("s_lshr_b32 s42, s42, 8")
    P.ins("s_mul_i32 s43, s42, 10")
    P.ins("s_sub_u32 s43, s40, s43")
    P.ins("s_mul_i32 s42, s42, 40960")
    P.ins("s_lshl_b32 s43, s43, 5")
    P.ins("s_add_u32 s42, s42, s43")
    P.ins("v_and_b32 v2, 31, v0")
    P.ins("v_lshrrev_b32 v3, 5, v0")
    P.ins("v_mul_u32_u24 v2, 1280, v2")
    P.ins("v_lshl_add_u32 v2, v3, 4, v2")
    P.wait_vm(tg[0])
    for r in range(4):
        P.ins("v_lshlrev_b32 v%d, 16, v%d" % (24 + 2 * r, 32 + r))
        P.ins("v_and_b32 v%d, 0xffff0000, v%d" % (25 + 2 * r, 32 + r))
    for p in range(1, 8):
        P.wait_vm(tg[p])
        t = 64 + 8 * (p & 1)
        for r in range(4):
            P.ins("v_lshlrev_b32 v%d, 16, v%d" % (t + 2 * r, 32 + 4 * p + r))
            P.ins("v_and_b32 v%d, 0xffff0000, v%d" % (t + 1 + 2 * r, 32 + 4 * p + r))
        for r in range(4):
            P.ins("v_pk_add_f32 %s, %s, %s" % (vr(24 + 2 * r, 2), vr(24 + 2 * r, 2), vr(t + 2 * r, 2)))
    for p in range(4):
        P.ins("v_cvt_pk_bf16_f32 v%d, v%d, v%d" % (4 + p, 24 + 2 * p, 24 + 2 * p + 1))
    P.vm("buffer_store_dwordx4 v[4:7], v2, s[20:23], s42 offen")
    ST.n = 29
    if STAMP:
        P.wait_vm_all()
        ST.stamp(P)
        P.label("R_dump")
        ST.dump(P, 200, 0)
    return P.text()

def gen_oproj():
    P = Prog()
    tags = {}
    ST = Stamper()
    if FUSED:
        P.label("O_start")
        P.ins("s_load_dwordx4 s[4:7], s[0:1], 32")
        P.ins("s_load_dwordx4 s[8:11], s[0:1], 48")
        if STAMP: P.ins("s_memrealtime s[58:59]")
        P.ins("s_waitcnt vmcnt(0) lgkmcnt(0)")
        P.ins("s_barrier")
        srd(P, 12, 8, 9, 256)
        P.ins("s_mov_b32 s8, s10"); P.ins("s_mov_b32 s9, s11")
        P.ins("s_cmp_eq_u32 s16, 0")
        P.ins("s_cbranch_scc0 O_nosig")
        P.ins("s_lshr_b32 s17, s2, 5")
        P.ins("s_lshl_b32 s17, s17, 5")
        P.ins("v_mov_b32 v1, 1")
        P.ins("v_mov_b32 v2, s17")
        P.ins("v_cmp_eq_u32 vcc, 0, v0")
        P.ins("s_and_saveexec_b64 s[18:19], vcc")
        P.ins("buffer_atomic_add v1, v2, s[12:15], 0 offen sc1")
        P.ins("s_mov_b64 exec, s[18:19]")
        P.label("O_nosig")
        P.ins("s_cmp_ge_u32 s2, 240")
        P.ins("s_cbranch_scc1 O_end")
        P.ins("s_mov_b32 s50, s16")
        P.ins("s_mov_b32 s[52:53], s[12:13]".replace("s_mov_b32", "s_mov_b64"))
        P.ins("s_mov_b64 s[54:55], s[14:15]")
    else:
        P.raw(".globl oproj_kernel\n.p2align 8\n.type oproj_kernel,@function\noproj_kernel:")
        P.ins("s_cmp_ge_u32 s2, 240")
        P.ins("s_cbranch_scc1 O_end")
        P.ins("s_load_dwordx4 s[4:7], s[0:1], 32")
        P.ins("s_load_dwordx2 s[8:9], s[0:1], 56")
        if STAMP: P.ins("s_memrealtime s[58:59]")
    P.ins("s_and_b32 s14, s2, 7")
    P.ins("s_lshr_b32 s15, s2, 3")
    P.ins("s_mul_i32 s16, s15, 52")
    P.ins("s_lshr_b32 s16, s16, 8")
    P.ins("s_mul_i32 s17, s16, 5")
    P.ins("s_sub_u32 s17, s15, s17")
    P.ins("s_mul_i32 s48, s16, 3")
    P.ins("s_mul_i32 s49, s17, 5")
    P.ins("s_add_u32 s48, s48, s49")
    P.ins("s_lshr_b32 s18, s14, 1")
    P.ins("s_mul_i32 s18, s18, 192")
    P.ins("s_lshl_b32 s19, s16, 5")
    P.ins("s_add_u32 s18, s18, s19")
    P.ins("s_and_b32 s19, s14, 1")
    P.ins("s_mul_i32 s19, s19, 320")
    P.ins("s_lshl_b32 s17, s17, 6")
    P.ins("s_add_u32 s19, s19, s17")
    if FUSED:
        P.ins("s_mul_i32 s51, s18, 683")
        P.ins("s_lshr_b32 s51, s51, 16")
        P.ins("s_lshl_b32 s51, s51, 5")
        P.ins("s_mov_b32 s16, s50")
    else:
        P.ins("v_lshrrev_b32 v1, 6, v0")
        P.ins("v_and_b32 v0, 63, v0")
        P.ins("s_nop 0")
        P.ins("v_readfirstlane_b32 s16, v1")
    P.ins("s_lshl_b32 s40, s18, 13")
    P.ins("s_lshl_b32 s45, s16, 11")
    P.ins("s_add_u32 s40, s40, s45")
    P.ins("s_mul_i32 s41, s18, 1280")
    P.ins("s_lshl_b32 s42, s19, 1")
    P.ins("s_add_u32 s41, s41, s42")
    P.ins("s_mul_i32 s43, s16, %d" % (1024 * 1280))
    P.ins("s_add_u32 s43, s43, s42")
    P.ins("s_mul_i32 s46, s16, 40960")
    P.ins("v_and_b32 v18, 31, v0")
    P.ins("v_lshrrev_b32 v19, 5, v0")
    P.ins("v_lshrrev_b32 v20, 4, v0")
    P.ins("v_and_b32 v21, 15, v0")
    P.ins("v_lshrrev_b32 v3, 3, v0")
    P.ins("v_bfe_u32 v4, v0, 4, 1")
    P.ins("v_lshlrev_b32 v4, 2, v4")
    P.ins("v_and_b32 v5, 7, v0")
    P.ins("v_xor_b32 v4, v4, v5")
    P.ins("v_lshlrev_b32 v4, 4, v4")
    P.ins("v_mul_u32_u24 v6, 1280, v3")
    P.ins("v_add_u32 v24, v6, v4")
    for i in range(1, 4):
        P.ins("v_add_u32 v%d, %d, v24" % (24 + i, i * (10240 - 1024)))
    for j in range(4):
        P.ins("v_add_u32 v4, %d, v20" % (4 * (j & 1)))
        P.ins("v_xor_b32 v4, v4, v5")
        P.ins("v_lshlrev_b32 v4, 4, v4")
        P.ins("v_lshl_add_u32 v4, v3, 13, v4")
        P.ins("v_add_u32 v%d, %d, v4" % (28 + j, j * (65536 - 1024)))
    P.ins("s_waitcnt lgkmcnt(0)")
    stamp_setup(P, 8, 9, 1)
    ST.stamp(P)
    P.ins("s_add_u32 s4, s4, s43"); P.ins("s_addc_u32 s5, s5, 0")
    P.ins("s_sub_u32 s44, 5242880, s43")
    srd(P, 20, 4, 5, "s44")
    P.ins("s_add_u32 s8, s8, s40"); P.ins("s_addc_u32 s9, s9, 0")
    P.ins("s_sub_u32 s44, %d, s45" % (32 * 8192))
    srd(P, 28, 8, 9, "s44")
    NS = int(os.environ.get('NS', '3'))
    SL = 12288
    DPOS = int(os.environ.get('DPOS', '4'))
    def dma(t, part=3):
        sl = (t % NS) * SL
        P.ins("s_add_u32 s47, s48, %d" % t)
        P.ins("s_and_b32 s47, s47, 15")
        if part & 1:
            P.ins("s_mul_i32 s49, s47, 81920")
            for sub in range(2):
                P.ins("s_add_u32 m0, s46, %d" % (sl + 4096 * sub))
                if sub: P.ins("s_add_u32 s49, s49, 40960")
                for i in range(4):
                    tags[('T', t)] = P.vm("buffer_load_dwordx4 v%d, s[20:23], s49 offen offset:%d lds" % (24 + i, i * 1024))
        if part & 2:
            P.ins("s_lshl_b32 s47, s47, 7")
            P.ins("s_add_u32 m0, s46, %d" % (sl + 8192))
            for j in range(4):
                tags[('T', t)] = P.vm("buffer_load_dwordx4 v%d, s[28:31], s47 offen offset:%d lds" % (28 + j, j * 1024))
    ST.stamp(P)
    if FUSED:
        for t in range(NS): dma(t, 1)
        ST.stamp(P)
        P.ins("s_cmp_eq_u32 s16, 0")
        P.ins("s_cbranch_scc0 O_nopoll")
        P.ins("v_mov_b32 v2, s51")
        P.ins("s_mov_b32 s56, 0")
        P.label("O_poll")
        P.ins("buffer_load_dword v1, v2, s[52:55], 0 offen sc1")
        P.ins("s_waitcnt vmcnt(0)")
        P.ins("v_readfirstlane_b32 s57, v1")
        P.ins("s_add_u32 s56, s56, 1")
        P.ins("s_cmp_ge_u32 s56, 0x40000")
        P.ins("s_cbranch_scc1 O_pdone")
        P.ins("s_cmp_ge_u32 s57, 32")
        P.ins("s_cbranch_scc1 O_pdone")
        P.ins("s_sleep 4")
        P.ins("s_branch O_poll")
        P.label("O_pdone")
        P.ins("buffer_inv sc1")
        P.ins("s_waitcnt vmcnt(0)")
        P.label("O_nopoll")
        P.ins("s_barrier")
        ST.stamp(P)
        for t in range(NS): dma(t, 2)
    else:
        for t in range(NS): dma(t)
    P.ins("s_add_u32 s6, s6, s41"); P.ins("s_addc_u32 s7, s7, 0")
    P.ins("s_sub_u32 s44, 983040, s41")
    srd(P, 24, 6, 7, "s44")
    P.ins("v_and_b32 v6, 1, v0")
    P.ins("v_bfe_u32 v7, v0, 1, 1")
    P.ins("v_lshrrev_b32 v8, 2, v21")
    P.ins("v_and_b32 v9, 1, v20")
    P.ins("v_lshl_or_b32 v9, v9, 1, v6")
    P.ins("v_lshlrev_b32 v9, 4, v9")
    P.ins("v_lshl_add_u32 v9, v7, 3, v9")
    P.ins("v_lshrrev_b32 v10, 1, v20")
    P.ins("v_lshl_add_u32 v10, v10, 3, v8")
    P.ins("v_lshl_add_u32 v9, v10, 7, v9")
    P.ins("v_add_u32 v9, s46, v9")
    P.ins("v_bfe_u32 v10, v0, 3, 1")
    for nb in range(2):
        P.ins("v_xor_b32 v11, %d, v10" % nb)
        P.ins("v_lshl_add_u32 v%d, v11, 6, v9" % (12 + nb))
    P.ins("v_bfe_u32 v6, v0, 1, 3")
    P.ins("v_lshlrev_b32 v7, 7, v18")
    P.ins("v_add_u32 v7, s46, v7")
    for ks in range(4):
        P.ins("v_add_u32 v8, %d, v19" % (2 * ks))
        P.ins("v_xor_b32 v8, v8, v6")
        P.ins("v_lshl_add_u32 v%d, v8, 4, v7" % (14 + ks))
    ACC = 32
    FR = 64
    FB = 96
    ST.stamp(P)
    for t in range(16):
        sl = (t % NS) * SL
        P.wait_vm(tags[('T', t)])
        if t == 0: ST.stamp(P)
        seq = []
        for ks in range(4):
            seq.append(Item("ds_read_b128 %s, v%d offset:%d" % (vr(FB + 4 * ks, 4), 14 + ks, sl + 8192), 'ds'))
            for nb in range(2):
                for r2 in range(2):
                    seq.append(Item("ds_read_b64_tr_b16 %s, v%d offset:%d" % (
                        vr(FR + (ks * 2 + nb) * 4 + 2 * r2, 2), 12 + nb,
                        sl + (ks >> 1) * 4096 + (ks & 1) * 2048 + r2 * 512), 'ds', tag=('r', t, ks, nb)))
        n = 0
        for ks in range(4):
            for nb in range(2):
                c = "0" if (t == 0 and ks == 0) else vr(ACC + 16 * nb, 16)
                seq.append(Item("v_mfma_f32_32x32x16_bf16 %s, %s, %s, %s" % (
                    vr(ACC + 16 * nb, 16), vr(FR + (ks * 2 + nb) * 4, 4), vr(FB + 4 * ks, 4), c),
                    need=[('r', t, ks, nb)]))
                n += 1
                if n == DPOS and t + NS < 16:
                    def f(t=t):
                        P.wait_ds_all()
                        dma(t + NS)
                    seq.append(f)
        emit(P, seq, tags)
        if t % 2 == 1: ST.stamp(P)
    P.ins("v_lshlrev_b32 v4, 4, v0")
    P.ins("v_add_u32 v5, s46, v4")
    for j in range(8):
        P.ds("ds_write_b128 v5, %s offset:%d" % (vr(ACC + 4 * j, 4), j * 1024))
    P.wait_ds_all()
    P.ins("s_barrier")
    P.ins("s_lshl_b32 s47, s16, 11")
    P.ins("v_add_u32 v5, s47, v4")
    P.ins("v_add_u32 v6, 81920, v5")
    for w in range(4):
        for q in range(2):
            a = "v5" if w < 2 else "v6"
            P.ds("ds_read_b128 %s, %s offset:%d" % (vr(64 + 8 * w + 4 * q, 4), a, (w % 2) * 40960 + q * 1024))
    P.wait_ds_all()
    for r in range(8):
        P.ins("v_add_f32 v%d, v%d, v%d" % (64 + r, 64 + r, 72 + r))
        P.ins("v_add_f32 v%d, v%d, v%d" % (80 + r, 80 + r, 88 + r))
    for r in range(8):
        P.ins("v_add_f32 v%d, v%d, v%d" % (64 + r, 64 + r, 80 + r))
    for p in range(4):
        P.ins("v_cvt_pk_bf16_f32 v%d, v%d, v%d" % (96 + p, 64 + 2 * p, 64 + 2 * p + 1))
    P.ins("v_mul_u32_u24 v7, 1280, v18")
    P.ins("v_lshl_add_u32 v7, v19, 4, v7")
    P.ins("s_lshl_b32 s47, s16, 5")
    P.ins("v_add_u32 v7, s47, v7")
    P.vm("buffer_store_dwordx4 v[96:99], v7, s[24:27], 0 offen")
    ST.stamp(P)
    if STAMP: P.wait_vm_all()
    ST.stamp(P)
    ST.dump(P, 100, 1)
    P.label("O_end")
    P.ins("s_endpgm")
    return P.text()

HEAD = """; Kernarg layout for this problem (64 bytes, ptrs only, base s[0:1]):
;   0 x, 8 k_cache, 16 v_cache, 24 wq, 32 wo, 40 out, 48 debug, 56 ws
""" + ("""; @launch grid=(256,1,1) block=(256,1,1) lds=163840
""" if FUSED else """; @launch kernel=attn_kernel grid=(256,1,1) block=(256,1,1) lds=163840
; @launch kernel=oproj_kernel grid=(240,1,1) block=(256,1,1) lds=163840
""") + """.amdgcn_target "amdgcn-amd-amdhsa--gfx950"
.text
"""
def kd(name, vg, acc):
    return """.amdhsa_kernel %s
  .amdhsa_next_free_vgpr %d
  .amdhsa_next_free_sgpr 102
  .amdhsa_accum_offset %d
  .amdhsa_group_segment_fixed_size 0
  .amdhsa_kernarg_size 64
  .amdhsa_user_sgpr_count 2
  .amdhsa_user_sgpr_kernarg_segment_ptr 1
  .amdhsa_system_sgpr_workgroup_id_x 1
.end_amdhsa_kernel
""" % (name, vg, acc)

if __name__ == "__main__":
    a, n1 = pad_hazards(gen_attn())
    o, n2 = "", 0
    print("pads", n1, n2, file=sys.stderr)
    s = HEAD + a + "\n" + o + '\n.section .rodata,"a"\n.p2align 6\n' + kd(KNAME, 512, 256) + ("" if FUSED else ".p2align 6\n" + kd("oproj_kernel", 128, 128))
    open(sys.argv[1], "w").write(s)
```

```python
import sys
from asmlib import *

NVREG = 6
WBASE = 131072
SC = 0.08838834764831845 * 1.4426950408889634
import struct
def f32bits(x): return struct.unpack('<I', struct.pack('<f', x))[0]

def vr(b, n=1): return "v%d" % b if n == 1 else "v[%d:%d]" % (b, b + n - 1)
def ar(b, n=1): return "a%d" % b if n == 1 else "a[%d:%d]" % (b, b + n - 1)

class Item:
    def __init__(self, t, k='x', tag=None, need=(), needvm=()):
        self.t = t; self.k = k; self.tag = tag; self.need = need; self.needvm = needvm

def emit(P, items, tags):
    for it in items:
        if callable(it):
            it(); continue
        for n in it.need: P.wait_ds(tags[n])
        for n in it.needvm: P.wait_vm(tags[n])
        if it.k == 'ds':
            tg = P.ds(it.t)
        elif it.k == 'vm':
            tg = P.vm(it.t)
        else:
            P.ins(it.t); tg = None
        if it.tag is not None: tags[it.tag] = tg

import os
STAMP = int(os.environ.get("STAMP", "0"))
LIM = int(os.environ.get("LIM", "64"))
PX = ""
B0E = int(os.environ.get("B0E", "0"))
WTOUCH = int(os.environ.get("WTOUCH", "1"))
FUSED = int(os.environ.get("FUSED", "1"))
KNAME = "standalone__gqa_block_cached__near_ridge_kernel" if FUSED else "attn_kernel"
PRE = int(os.environ.get("PRE", "0"))
INV = int(os.environ.get("INV", "0"))
PKF = int(os.environ.get("PKF", "0"))
IPF = int(os.environ.get("IPF", "1"))
TLBW = int(os.environ.get("TLBW", "0"))
OIL = int(os.environ.get("OIL", "2"))
PLIM = int(os.environ.get("PLIM", "16"))
LIM2 = int(os.environ.get("LIM2", "64"))
class Stamper:
    def __init__(self): self.n = 0
    def stamp(self, P):
        if not STAMP: return
        P.wait_ds_all()
        P.ins("s_memtime s[56:57]")
        P.ins("s_waitcnt lgkmcnt(0)")
        P.ins("s_mov_b32 s%d, s56" % (64 + self.n))
        self.n += 1
        assert self.n <= 30
    def dump(self, P, vtmp, kern):
        if not STAMP: return
        P.ins("v_mov_b32 v%d, 0" % vtmp)
        for i in range(30):
            P.ins("v_writelane_b32 v%d, s%d, %d" % (vtmp, 64 + i, i))
        P.ins("v_writelane_b32 v%d, s58, 30" % vtmp)
        P.ins("s_memrealtime s[56:57]")
        P.ins("s_waitcnt lgkmcnt(0)")
        P.ins("v_writelane_b32 v%d, s56, 31" % vtmp)
        P.ins("s_lshl_b32 s56, s2, 2")
        P.ins("s_add_u32 s56, s56, s16")
        P.ins("s_lshl_b32 s56, s56, 7")
        P.ins("v_lshlrev_b32 v%d, 2, v0" % (vtmp + 1))
        P.ins("v_cmp_gt_u32 vcc, 32, v0")
        P.ins("s_and_saveexec_b64 s[54:55], vcc")
        P.ins("buffer_store_dword v%d, v%d, s[60:63], s56 offen offset:0" % (vtmp, vtmp + 1))
        P.ins("s_mov_b64 exec, s[54:55]")
def stamp_setup(P, wslo, wshi, kern):
    if not STAMP: return
    P.ins("s_add_u32 s60, s%d, 0x%x" % (wslo, (16 + 1 * kern) << 20))
    P.ins("s_addc_u32 s61, s%d, 0" % wshi)
    P.ins("s_and_b32 s61, s61, 0xffff")
    P.ins("s_mov_b32 s62, 0x100000")
    P.ins("s_mov_b32 s63, 0x00020000")

def srd(P, d, blo, bhi, size):
    P.ins("s_mov_b32 s%d, s%d" % (d, blo))
    P.ins("s_and_b32 s%d, s%d, 0xffff" % (d + 1, bhi))
    if isinstance(size, str): P.ins("s_mov_b32 s%d, %s" % (d + 2, size))
    else: P.ins("s_mov_b32 s%d, 0x%x" % (d + 2, size))
    P.ins("s_mov_b32 s%d, 0x00020000" % (d + 3))

def gen_attn():
    P = Prog()
    P.raw(".globl %s\n.p2align 8\n.type %s,@function\n%s:" % (KNAME, KNAME, KNAME))
    P.ins("s_cmp_ge_u32 s2, 256")
    P.ins("s_cbranch_scc1 A_end")
    if IPF == 2:
        P.ins("s_getpc_b64 s[40:41]")
        P.label("L_pc0")
        P.ins("s_sub_u32 s40, s40, L_pc0-%s" % KNAME)
        P.ins("s_subb_u32 s41, s41, 0")
        P.ins("s_bfe_u32 s42, s2, 0x10003")
        P.ins("s_lshl_b32 s42, s42, 15")
        P.ins("v_lshlrev_b32 v1, 7, v0")
        P.ins("v_add_u32 v1, s42, v1")
        P.ins("v_min_u32 v1, A_end-%s, v1" % KNAME)
        P.ins("global_load_dword v100, v1, s[40:41]")
    P.ins("s_load_dwordx4 s[4:7], s[0:1], 0")
    P.ins("s_load_dwordx4 s[8:11], s[0:1], 16")
    P.ins("s_load_dwordx2 s[12:13], s[0:1], 56")
    P.ins("s_load_dwordx2 s[52:53], s[0:1], 32")
    P.ins("s_load_dwordx4 s[96:99], s[0:1], 48")
    P.ins("s_load_dwordx2 s[100:101], s[0:1], 40")
    if STAMP:
        P.ins("s_memrealtime s[58:59]")
        for i in range(30): P.ins("s_mov_b32 s%d, 0" % (64 + i))
    P.ins("s_and_b32 s14, s2, 7")
    P.ins("s_lshl_b32 s14, s14, 2")
    P.ins("s_bfe_u32 s15, s2, 0x20003")
    P.ins("s_add_u32 s14, s14, s15")
    P.ins("s_lshr_b32 s15, s2, 5")
    P.ins("v_lshrrev_b32 v1, 6, v0")
    P.ins("v_and_b32 v0, 63, v0")
    P.ins("s_nop 0")
    P.ins("v_readfirstlane_b32 s16, v1")
    P.ins("s_lshl_b32 s17, s15, 5")
    P.ins("s_add_u32 s17, s17, s14")
    P.ins("s_mul_i32 s41, s17, 24576")
    P.ins("s_lshl_b32 s17, s17, 17")
    P.ins("s_mul_i32 s18, s15, 122880")
    P.ins("s_lshl_b32 s19, s14, 8")
    P.ins("s_and_b32 s42, s2, 7")
    P.ins("s_mul_i32 s42, s42, 655360")
    P.ins("s_and_b32 s43, s14, 3")
    P.ins("s_mul_i32 s43, s43, 320")
    P.ins("s_add_u32 s42, s42, s43")
    P.ins("s_waitcnt lgkmcnt(0)")
    stamp_setup(P, 12, 13, 0)
    P.ins("s_add_u32 s52, s52, s42"); P.ins("s_addc_u32 s53, s53, 0")
    P.ins("s_sub_u32 s42, 5242880, s42")
    srd(P, 48, 52, 53, "s42")
    P.ins("s_add_u32 s4, s4, s18"); P.ins("s_addc_u32 s5, s5, 0")
    srd(P, 20, 4, 5, 122880)
    P.ins("s_add_u32 s6, s6, s17"); P.ins("s_addc_u32 s7, s7, 0")
    srd(P, 24, 6, 7, 131072)
    P.ins("s_add_u32 s8, s8, s17"); P.ins("s_addc_u32 s9, s9, 0")
    srd(P, 28, 8, 9, 131072)
    P.ins("s_add_u32 s10, s10, s19"); P.ins("s_addc_u32 s11, s11, 0")
    P.ins("s_sub_u32 s42, 5242880, s19")
    srd(P, 32, 10, 11, "s42")
    P.ins("s_add_u32 s12, s12, s41"); P.ins("s_addc_u32 s13, s13, 0")
    srd(P, 36, 12, 13, 24576)
    P.ins("s_cmp_eq_u32 s16, 3")
    P.ins("s_cbranch_scc1 A_loader")
    pre = P.text()
    comp = gen_compute()
    load = gen_loader()
    return pre + comp + load + gen_final() + "A_end:\n    s_endpgm\n"

AK = 1
AV = 9
VO = 13
VM = 14
VL0 = 15; VL1 = 16
VMC = 17
VT = 18
QF = 24
SB = 56
TMP = 248
XF = 24
QACC = 184
AS = 0
AO = 64
AF = 128

def Sreg(kb, r=0, n=16):
    if kb < 12: return vr(SB + 16 * kb + r, n)
    return ar(AS + 16 * (kb - 12) + r, n)

def gen_compute():
    P = Prog()
    tags = {}
    ST = Stamper(); ST.stamp(P)
    P.ins("v_and_b32 v18, 31, v0")
    P.ins("v_lshrrev_b32 v19, 5, v0")
    P.ins("v_lshrrev_b32 v20, 4, v0")
    P.ins("v_and_b32 v21, 15, v0")
    P.ins("s_lshl_b32 s40, s16, 5")
    P.ins("v_add_u32 v22, s40, v18")
    P.ins("v_lshlrev_b32 v%d, 13, v22" % VO)
    P.ins("v_lshl_add_u32 v%d, v19, 4, v%d" % (VO, VO))
    P.ins("v_lshlrev_b32 v249, 2, v20")
    P.ins("v_xor_b32 v249, v21, v249")
    P.ins("v_lshlrev_b32 v249, 4, v249")
    P.ins("v_lshl_add_u32 v248, v20, 13, v249")
    def wtile(T):
        if T is None:
            P.ins("s_lshl_b32 m0, s46, 13")
            P.ins("s_add_u32 s40, s46, s45")
            P.ins("s_cmp_ge_u32 s40, 20")
            P.ins("s_cselect_b32 s41, 20, 0")
            P.ins("s_sub_u32 s40, s40, s41")
            P.ins("s_lshl_b32 s40, s40, 18")
            P.ins("s_add_u32 s46, s46, 1")
        else:
            P.ins("s_mov_b32 m0, %d" % (T * 8192))
            P.ins("s_mov_b32 s40, %d" % (T * 32 * 8192))
        for i in range(8):
            P.vm("buffer_load_dwordx4 v248, s[32:35], s40 offen lds")
            if i < 7:
                P.ins("s_add_u32 m0, m0, 1024")
                P.ins("s_add_u32 s40, s40, 32768")
    P.ins("s_and_b32 s43, s14, 3")
    P.ins("s_add_u32 s43, s43, s15")
    for _ in range(2):
        P.ins("s_cmp_ge_u32 s43, 5")
        P.ins("s_cselect_b32 s40, 5, 0")
        P.ins("s_sub_u32 s43, s43, s40")
    P.ins("s_lshl_b32 s45, s43, 2")
    P.ins("s_lshl_b32 s40, s16, 5")
    for j in range(4):
        P.ins("v_add_u32 v249, %d, v20" % (4 * j))
        P.ins("v_xor_b32 v254, v249, v21")
        P.ins("v_add_u32 v249, s40, v249")
        P.ins("v_mul_u32_u24 v249, 1280, v249")
        P.ins("v_lshl_add_u32 v%d, v254, 4, v249" % (250 + j))
    P.ins("s_add_u32 s47, s16, 1")
    P.ins("s_mul_i32 s47, s47, 40960")
    P.ins("s_mov_b32 m0, s47")
    P.ins("s_lshl_b32 s40, s43, 8")
    ST.stamp(P)
    for c in range(5):
        for i in range(8):
            if i == 4: P.ins("s_add_u32 s41, s40, 20480")
            if 'x' not in PX:
                P.vm("buffer_load_dwordx4 v%d, s[20:23], %s offen lds" % (250 + (i & 3), "s40" if i < 4 else "s41"))
            if not (c == 4 and i == 7): P.ins("s_add_u32 m0, m0, 1024")
        if c < 4:
            P.ins("s_add_u32 s40, s40, 256")
            P.ins("s_cmp_ge_u32 s40, 1280")
            P.ins("s_cselect_b32 s41, 1280, 0")
            P.ins("s_sub_u32 s40, s40, s41")
    ST.stamp(P)
    P.ins("s_mov_b32 s46, s16")
    if 'w' not in PX: wtile(None)
    P.ins("s_add_u32 s46, s16, 3")
    P.ins("s_cmp_eq_u32 s16, 2")
    P.ins("s_cselect_b32 s46, 2, s46")
    if 'w' not in PX: wtile(None)
    ST.stamp(P)
    P.ins("v_and_b32 v249, 1, v0")
    P.ins("v_bfe_u32 v250, v0, 1, 1")
    P.ins("v_lshrrev_b32 v251, 2, v21")
    P.ins("v_and_b32 v252, 1, v20")
    P.ins("v_lshl_or_b32 v252, v252, 1, v249")
    P.ins("v_lshlrev_b32 v252, 4, v252")
    P.ins("v_lshl_add_u32 v252, v250, 3, v252")
    P.ins("v_lshrrev_b32 v253, 1, v20")
    P.ins("v_lshl_add_u32 v254, v253, 3, v251")
    P.ins("v_lshl_add_u32 v254, v254, 8, v252")
    P.ins("v_lshl_add_u32 v255, v253, 2, v251")
    P.ins("v_lshl_add_u32 v255, v255, 8, v252")
    for db in range(4):
        P.ins("v_xor_b32 v249, %d, v251" % db)
        P.ins("v_lshl_add_u32 v%d, v249, 6, v254" % (AV + db))
    P.ins("v_mov_b32 v16, v255")
    P.ins("v_mov_b32 v17, v251")
    for s in range(8):
        P.ins("v_add_u32 v249, %d, v19" % (2 * s))
        P.ins("v_xor_b32 v249, v249, v21")
        P.ins("v_lshlrev_b32 v249, 4, v249")
        P.ins("v_lshl_add_u32 v%d, v18, 8, v249" % (AK + s))
    P.ins("s_mov_b32 s44, 0x%x" % f32bits(SC))
    ST.stamp(P)
    for s in range(8): P.ins("v_add_u32 v%d, s47, v%d" % (AK + s, AK + s))
    for c in range(5):
        P.ins("s_waitcnt vmcnt(%d)" % (16 + 32 - 8 * c))
        for s in range(8):
            P.ds("ds_read_b128 %s, v%d offset:%d" % (vr(XF + 4 * (8 * c + s), 4), AK + s, c * 8192))
    P.wait_ds_all()
    for s in range(8): P.ins("v_subrev_u32 v%d, s47, v%d" % (AK + s, AK + s))
    ST.stamp(P)
    if B0E:
        P.ins("s_waitcnt vmcnt(0)")
        P.ins("s_barrier")
    P.ins("s_mul_i32 s46, s16, 5")
    P.ins("s_add_u32 s46, s46, 5")
    for n in range(5): wtile(None)
    if not B0E:
        P.ins("s_waitcnt vmcnt(40)")
        P.ins("s_barrier")
    ST.stamp(P)
    def wreads(t):
        its = []
        buf = t % 2
        if t in (8, 16):
            for db in range(4):
                its.append(Item("v_add_u32 v%d, 0x10000, v%d" % (AV + db, AV + db)))
        for ks2 in range(2):
            for db in range(4):
                for r2 in range(2):
                    its.append(Item("ds_read_b64_tr_b16 %s, v%d offset:%d" % (
                        ar(AF + 32 * buf + (ks2 * 4 + db) * 4 + 2 * r2, 2), AV + db,
                        (t % 8) * 8192 + ks2 * 4096 + r2 * 1024), 'ds', tag=('w', t, ks2, db)))
        return its
    def wmfma(t):
        its = []
        buf = t % 2
        for ks2 in range(2):
            for db in range(4):
                c = "0" if (t == 0 and ks2 == 0) else vr(QACC + 16 * db, 16)
                its.append(Item("v_mfma_f32_32x32x16_bf16 %s, %s, %s, %s" % (
                    vr(QACC + 16 * db, 16), ar(AF + 32 * buf + (ks2 * 4 + db) * 4, 4),
                    vr(XF + 4 * (2 * t + ks2), 4), c), need=[('w', t, ks2, db)]))
        return its
    def qbar():
        P.wait_vm_all()
        P.wait_ds_all()
        P.ins("s_barrier")
    emit(P, wreads(0), tags)
    for t in range(20):
        mf = wmfma(t)
        rd = wreads(t + 1) if t < 19 else []
        bnd = (t + 1) in (5, 20)
        g0 = 3 if bnd else 0
        seq = []
        per = (len(rd) + 3) // 4
        for n, m in enumerate(mf):
            seq.append(m)
            if bnd and n == g0 - 1: seq.append(qbar)
            if g0 <= n < g0 + 4: seq += rd[per * (n - g0):per * (n - g0 + 1)]
        emit(P, seq, tags)
    for db in range(4):
        P.ins("v_xor_b32 v249, %d, v17" % db)
        P.ins("v_lshl_add_u32 v%d, v249, 6, v16" % (AV + db))
        P.ins("v_add_u32 v%d, 0x%x, v%d" % (AV + db, 131072, AV + db))
    P.ins("v_mov_b32 v%d, 0xff800000" % VM)
    for s in range(8):
        for p in range(4):
            a = QACC + 16 * (s >> 1) + 8 * (s & 1) + 2 * p
            P.ins("v_cvt_pk_bf16_f32 v%d, v%d, v%d" % (QF + 4 * s + p, a, a + 1))
    ST.stamp(P)
    VMCE = 248; VLE = 250
    VMCL = 24; VLL = 26
    VM2 = 15; VC = 16
    AO2 = 192
    P.ins("s_mov_b32 s45, s44")
    P.ins("v_mov_b32 v%d, 0xff800000" % VM2)
    def kreads(kb):
        its = []
        for s in range(8):
            its.append(Item("ds_read_b128 %s, v%d offset:%d" % (ar(AF + 32 * (kb % 2) + 4 * s, 4), AK + s, (kb % 8) * 8192),
                            'ds', tag=('k', kb, s)))
        return its
    def smfma(kb):
        its = []
        for s in range(8):
            c = "0" if s == 0 else Sreg(kb)
            its.append(Item("v_mfma_f32_32x32x16_bf16 %s, %s, %s, %s" % (
                Sreg(kb), ar(AF + 32 * (kb % 2) + 4 * s, 4), vr(QF + 4 * s, 4), c), need=[('k', kb, s)]))
        return its
    def maxops(kb):
        its = []
        M = VM if kb < 8 else VM2
        for p in range(8):
            if kb < 12:
                a = SB + 16 * kb + 2 * p
                its.append(Item("v_max3_f32 v%d, v%d, v%d, v%d" % (M, a, a + 1, M)))
            else:
                a = AS + 16 * (kb - 12) + 2 * p
                t0 = 252 + 2 * (p % 2)
                its.append(Item("v_accvgpr_read_b32 v%d, a%d" % (t0, a)))
                its.append(Item("v_accvgpr_read_b32 v%d, a%d" % (t0 + 1, a + 1)))
                its.append(Item("v_max3_f32 v%d, v%d, v%d, v%d" % (M, t0, t0 + 1, M)))
        return its
    def xmax(M):
        return [Item("v_mov_b32 v%d, v%d" % (VT, M)), Item("v_mov_b32 v%d, v%d" % (VT + 1, M)),
                Item("v_permlane32_swap_b32 v%d, v%d" % (VT, VT + 1)),
                Item("v_max_f32 v%d, v%d, v%d" % (M, VT, VT + 1))]
    def barrier():
        P.wait_ds_all()
        P.ins("s_barrier")
    def Preg(kk):
        kb = kk >> 1; u = kk & 1
        if kb < 12: return SB + 16 * kb + 4 * u
        i2 = 2 * (kb - 12) + u
        return SB + 16 * i2 + 8
    def eops(kb):
        its = []
        MC, L = (VMCE, VLE) if kb < 8 else (VMCL, VLL)
        if kb < 12:
            regs = [SB + 16 * kb + r for r in range(16)]
        else:
            regs = [SB + 16 * (2 * (kb - 12) + (r >> 3)) + 8 + (r & 7) for r in range(16)]
        def dst(p):
            if kb < 12: return SB + 16 * kb + p
            return SB + 16 * (2 * (kb - 12) + (p >> 2)) + 8 + (p & 3)
        for p in range(11):
            if p < 8:
                a = regs[2 * p]
                if kb >= 12:
                    its.append(Item("v_accvgpr_read_b32 v%d, a%d" % (a, AS + 16 * (kb - 12) + 2 * p)))
                    its.append(Item("v_accvgpr_read_b32 v%d, a%d" % (a + 1, AS + 16 * (kb - 12) + 2 * p + 1)))
                if PKF & 1:
                    its.append(Item("v_pk_fma_f32 %s, %s, s[44:45], %s neg_lo:[0,0,1] neg_hi:[0,0,1]" % (vr(a, 2), vr(a, 2), vr(MC, 2))))
                else:
                    its.append(Item("v_fma_f32 v%d, v%d, s44, -v%d" % (a, a, MC)))
                    its.append(Item("v_fma_f32 v%d, v%d, s44, -v%d" % (a + 1, a + 1, MC)))
            if 0 <= p - 1 < 8:
                a = regs[2 * (p - 1)]
                its.append(Item("v_exp_f32 v%d, v%d" % (a, a)))
                its.append(Item("v_exp_f32 v%d, v%d" % (a + 1, a + 1)))
            if 0 <= p - 2 < 8:
                a = regs[2 * (p - 2)]
                if PKF & 2:
                    its.append(Item("v_pk_add_f32 %s, %s, %s" % (vr(L, 2), vr(L, 2), vr(a, 2))))
                else:
                    its.append(Item("v_add_f32 v%d, v%d, v%d" % (L, L, a)))
                    its.append(Item("v_add_f32 v%d, v%d, v%d" % (L + 1, L + 1, a + 1)))
            if 0 <= p - 3 < 8:
                q = p - 3
                its.append(Item("v_cvt_pk_bf16_f32 v%d, v%d, v%d" % (dst(q), regs[2 * q], regs[2 * q + 1])))
        return its
    barrier()
    emit(P, kreads(0), tags)
    for kb in range(16):
        mf = smfma(kb)
        seq = []
        nxt = kb + 1
        pre_items = []
        if nxt < 16:
            if nxt in (2, 6, 10, 14):
                pre_items.append(barrier)
            if nxt == 8:
                for s in range(8):
                    pre_items.append(Item("v_add_u32 v%d, 0x10000, v%d" % (AK + s, AK + s)))
            rd = kreads(nxt)
        else:
            rd = []
        fill = maxops(kb - 1) if kb >= 1 else []
        if kb == 8:
            fill += xmax(VM) + [Item("v_mul_f32 v%d, s44, v%d" % (VMCE, VM)), Item("v_mul_f32 v%d, s44, v%d" % (VMCE + 1, VM)),
                                Item("v_mov_b32 v%d, 0" % VLE), Item("v_mov_b32 v%d, 0" % (VLE + 1))]
        if kb >= 9: fill += eops(kb - 9)
        seq += pre_items
        for n, m in enumerate(mf):
            seq.append(m)
            if n < 4: seq += rd[2 * n:2 * n + 2]
            if n >= 2:
                k0 = (len(fill) * (n - 2)) // 6; k1 = (len(fill) * (n - 1)) // 6
                seq += fill[k0:k1]
        emit(P, seq, tags)
    e7 = eops(7)
    emit(P, e7[:12] + maxops(15) + e7[12:] + xmax(VM2), tags)
    P.ins("v_max_f32 v%d, v%d, v%d" % (VM2, VM, VM2))
    P.ins("v_mul_f32 v%d, s44, v%d" % (VMCL, VM2))
    P.ins("v_mul_f32 v%d, s44, v%d" % (VMCL + 1, VM2))
    P.ins("v_sub_f32 v%d, v%d, v%d" % (VC, VMCE, VMCL))
    P.ins("v_exp_f32 v%d, v%d" % (VC, VC))
    P.ins("v_mov_b32 v%d, 0" % VLL)
    P.ins("v_mov_b32 v%d, 0" % (VLL + 1))
    ST.stamp(P)
    def vbase(j): return (j - 2) * 16384 if j >= 2 else 131072 + j * 16384
    def vreads(kk):
        its = []
        for db in range(4):
            for r2 in range(2):
                its.append(Item("ds_read_b64_tr_b16 %s, v%d offset:%d" % (
                    ar(AF + 16 * (kk % 4) + 4 * db + 2 * r2, 2), AV + db, (kk & 3) * 4096 + r2 * 2048),
                    'ds', tag=('v', kk, db)))
        return its
    def pmfma(kk):
        its = []
        A = AO if kk < 16 else AO2
        for db in range(4):
            c = "0" if kk in (0, 16) else ar(A + 16 * db, 16)
            its.append(Item("v_mfma_f32_32x32x16_bf16 %s, %s, %s, %s" % (
                ar(A + 16 * db, 16), ar(AF + 16 * (kk % 4) + 4 * db, 4), vr(Preg(kk), 4), c), need=[('v', kk, db)]))
        return its
    def pbar(j):
        def f():
            if j not in (1, 3): P.ins("s_barrier")
            if j > 0:
                d = vbase(j) - vbase(j - 1)
                for db in range(4):
                    P.ins("v_add_u32 v%d, 0x%x, v%d" % (AV + db, d & 0xffffffff, AV + db))
        return f
    ework = []
    for kb in range(8, 16): ework += [(kb, it) for it in eops(kb)]
    emit(P, [pbar(0)] + vreads(0) + vreads(1), tags)
    epos = 0
    acc = 0.0
    blk_len = len(eops(8))
    OF = SB + 128
    def T(db, r): return SB + 16 * (2 * db + (r >> 3)) + (r & 7)
    class Rec:
        def __init__(self): self.its = []
        def ins(self, t): self.its.append(Item(t))
    R = Rec()
    R.ins("v_add_f32 v%d, v%d, v%d" % (VLE, VLE, VLE + 1))
    R.ins("v_add_f32 v%d, v%d, v%d" % (VLL, VLL, VLL + 1))
    R.ins("v_fma_f32 v%d, v%d, v%d, v%d" % (VLE, VLE, VC, VLL))
    R.ins("v_mov_b32 v%d, v%d" % (VT, VLE))
    R.ins("v_mov_b32 v%d, v%d" % (VT + 1, VLE))
    R.ins("v_permlane32_swap_b32 v%d, v%d" % (VT, VT + 1))
    R.ins("v_add_f32 v%d, v%d, v%d" % (VLE, VT, VT + 1))
    R.ins("v_rcp_f32 v%d, v%d" % (VLL, VLE))
    R.ins("v_mul_f32 v%d, v%d, v%d" % (VC, VC, VLL))
    R.ins("v_mov_b32 v%d, v%d" % (VLL + 1, VLL))
    R.ins("v_mov_b32 v%d, v%d" % (VLE, VC))
    R.ins("v_mov_b32 v%d, v%d" % (VLE + 1, VC))
    R.ins("s_lshl_b32 s40, s16, 13")
    R.ins("s_add_u32 s41, s40, 4096")
    R.ins("v_lshlrev_b32 v%d, 4, v0" % VO)
    for db in range(4):
        for r in range(16):
            R.ins("v_accvgpr_read_b32 v%d, a%d" % (T(db, r), AO + 16 * db + r))
        for p in range(8):
            R.ins("v_pk_mul_f32 %s, %s, %s" % (vr(T(db, 2 * p), 2), vr(T(db, 2 * p), 2), vr(VLE, 2)))
    R.ins("v_and_b32 v6, 1, v0")
    R.ins("v_bfe_u32 v7, v0, 1, 1")
    R.ins("v_bfe_u32 v8, v0, 2, 2")
    R.ins("v_bfe_u32 v5, v0, 4, 1")
    R.ins("v_lshl_or_b32 v5, v5, 1, v6")
    R.ins("v_lshlrev_b32 v5, 4, v5")
    R.ins("v_lshl_add_u32 v5, v7, 3, v5")
    R.ins("v_lshrrev_b32 v4, 5, v0")
    R.ins("v_lshl_add_u32 v4, v4, 3, v8")
    R.ins("v_mul_u32_u24 v4, 320, v4")
    R.ins("v_add_u32 v1, v4, v5")
    R.ins("v_add_u32 v2, 61440, v1")
    R.ins("v_add_u32 v3, 122880, v1")
    R.ins("v_add_u32 v4, s40, v%d" % VO)
    R.ins("s_and_b32 s42, s14, 28")
    R.ins("s_lshl_b32 s43, s15, 5")
    R.ins("s_add_u32 s42, s42, s43")
    R.ins("s_mul_i32 s42, s42, 24576")
    R.ins("s_add_u32 s4, s98, s42"); R.ins("s_addc_u32 s5, s99, 0")
    srd(R, 24, 4, 5, 98304)
    part_srd(R)
    isb = lambda it, n: n < 12 or it.t.startswith("v_pk_mul")
    early_b = [it for n, it in enumerate(R.its) if isb(it, n)]
    early_a = [it for n, it in enumerate(R.its) if not isb(it, n)]
    def late(db):
        its = []
        U = 216 + 16 * (db & 1)
        ob = OF + 8 * db
        for u in range(2):
            for r in range(8 * u, 8 * u + 8):
                its.append(Item("v_accvgpr_read_b32 v%d, a%d" % (U + r, AO2 + 16 * db + r)))
            for p in range(4 * u, 4 * u + 4):
                its.append(Item("v_pk_fma_f32 %s, %s, %s, %s" % (vr(T(db, 2 * p), 2), vr(U + 2 * p, 2), vr(VLL, 2), vr(T(db, 2 * p), 2))))
            for p in range(4 * u, 4 * u + 4):
                its.append(Item("v_cvt_pk_bf16_f32 v%d, v%d, v%d" % (ob + p, T(db, 2 * p), T(db, 2 * p) + 1)))
            sidx = 2 * db + u
            its.append(Item("buffer_store_dwordx4 %s, v%d, s[36:39], %s offen offset:%d sc1" % (
                vr(ob + 4 * u, 4), VO, "s40" if sidx < 4 else "s41", (sidx & 3) * 1024), 'vm'))
        return its
    ERATE = float(os.environ.get("ERATE", "0.46"))
    A0, A1 = 16, 22
    E0, E1 = 22, 26
    for kk in range(28):
        mf = pmfma(kk)
        fill = []
        acc += ERATE * blk_len
        tgt = int(acc)
        must = (kk + 1) >> 1
        while epos < len(ework) and (epos < tgt or ework[epos][0] <= must):
            fill.append(ework[epos][1]); epos += 1
        if A0 <= kk < A1:
            fill += early_a[(len(early_a) * (kk - A0)) // (A1 - A0):(len(early_a) * (kk - A0 + 1)) // (A1 - A0)]
        if E0 <= kk < E1:
            assert epos == len(ework)
            fill += early_b[(len(early_b) * (kk - E0)) // (E1 - E0):(len(early_b) * (kk - E0 + 1)) // (E1 - E0)]
        pre_items = []
        rd = []
        n2 = kk + 2
        if n2 < 32:
            if n2 % 4 == 0: pre_items.append(pbar(n2 // 4))
            rd = vreads(n2)
        seq = list(pre_items)
        fl = rd + fill
        seq += interleave(mf, fl)
        emit(P, seq, tags)
        if kk % 8 == 7: ST.stamp(P)
    r30 = vreads(30); r31 = vreads(31)
    seq = []
    for db in range(4): seq += r30[2 * db:2 * db + 2] + r31[2 * db:2 * db + 2]
    mfs = [pmfma(kk) for kk in range(28, 32)]
    for db in range(4):
        m4 = [mfs[k][db] for k in range(4)]
        fl = late(db - 1) if db > 0 else []
        seq += [m4[0]] + interleave(m4[1:], fl)
    seq += late(3)
    emit(P, seq, tags)
    ST.stamp(P)
    P.ins("s_barrier")
    ST.stamp(P)
    ACC = [24, 40, 152, 168, 216]; PK = 232
    KM = int(os.environ.get("KM", "16")); DD = int(os.environ.get("DD", "6")); RING = 12
    ops = [(n, cb) for n in range(KM) for cb in range(5)]
    groups = [(0, 1), (2, 3), (4,)]
    gend = {}
    for g in groups:
        ops += [(n, cb) for n in range(KM, 32) for cb in g]
        gend[len(ops) - 1] = g
    def bread(i):
        n, cb = ops[i]
        pos = (20 + n) & 31
        return [Item("ds_read_b64_tr_b16 %s, v%d offset:%d" % (
                    ar(AF + 4 * (i % RING) + 2 * r2, 2), 1 + pos // 12,
                    (pos % 12) * 5120 + r2 * 1280 + cb * 64), 'ds', tag=('b', i)) for r2 in range(2)]
    def bmfma(i):
        n, cb = ops[i]
        bf = vr(OF + 4 * n, 4) if n < 8 else vr(SB + 4 * (n - 8), 4)
        c = "0" if n == 0 else vr(ACC[cb], 16)
        return Item("v_mfma_f32_32x32x16_bf16 %s, %s, %s, %s" % (
                vr(ACC[cb], 16), ar(AF + 4 * (i % RING), 4), bf, c),
                need=[('b', i)], needvm=[('o', n)] if n >= 8 else ())
    oq = []
    for i in range(1, 4):
        sa, sb = ("s42", "s43") if i & 1 else ("s44", "s45")
        oq.append([Item("s_add_u32 %s, s14, %d" % (sa, i)), Item("s_and_b32 %s, %s, 3" % (sa, sa)),
                   Item("s_mul_i32 %s, %s, 24576" % (sa, sa)), Item("s_add_u32 %s, %s, 4096" % (sb, sa))])
        for s_ in range(8):
            n = 8 * i + s_
            it = Item("buffer_load_dwordx4 %s, v4, s[24:27], %s offen offset:%d" % (
                vr(SB + 4 * (n - 8), 4), sa if s_ < 4 else sb, (s_ & 3) * 1024), 'vm', tag=('o', n))
            if s_ == 0: oq[-1].append(it)
            else: oq.append([it])
    def pstores(cb):
        pk = PK + 8 * (cb & 1)
        its = []
        for u in range(2):
            for p in range(4):
                its.append(Item("v_cvt_pk_bf16_f32 v%d, v%d, v%d" % (pk + 4 * u + p, ACC[cb] + 8 * u + 2 * p, ACC[cb] + 8 * u + 2 * p + 1)))
            its.append(Item("buffer_store_dwordx4 %s, v%d, s[28:31], %s offen offset:%d sc1" % (
                vr(pk + 4 * u, 4), VO, ("s46", "s47", "s40")[cb >> 1], ((2 * cb + u) & 3) * 1024), 'vm'))
        return its
    P.ins("s_and_b32 s46, s2, 7")
    P.ins("s_mul_i32 s46, s46, 30720")
    P.ins("s_mul_i32 s47, s16, 10240")
    P.ins("s_add_u32 s46, s46, s47")
    P.ins("s_add_u32 s47, s46, 4096")
    P.ins("s_add_u32 s40, s46, 8192")
    NOWN = int(os.environ.get("NOWN", "40"))
    for i in range(DD): emit(P, bread(i), tags)
    rdn = DD
    pend = []; hold = 0
    for i in range(len(ops)):
        if i == NOWN:
            P.wait_vm_all()
            P.ins("s_barrier")
            ST.stamp(P)
            P.ins("s_barrier")
            ST.stamp(P)
            seq = []
            for _ in range(24 if NOWN == 40 else max(4, 24 - OIL * (40 - NOWN))): seq += oq.pop(0)
            while rdn < i + DD: seq += bread(rdn); rdn += 1
            emit(P, seq, tags)
        seq = [bmfma(i)]
        if rdn < len(ops) and (rdn < 40 or i >= NOWN): seq += bread(rdn); rdn += 1
        if i >= NOWN:
            for _ in range(OIL):
                if oq: seq += oq.pop(0)
        if hold > 0: hold -= 1
        else:
            seq += pend[:3]; pend = pend[3:]
        if i in gend:
            for cb in gend[i]: pend += pstores(cb)
            hold = 1
        emit(P, seq, tags)
        if i in (39, 79, 111, 143): ST.stamp(P)
    emit(P, pend, tags)
    ST.stamp(P)
    P.wait_vm_all()
    ST.stamp(P)
    P.ins("s_barrier")
    P.ins("s_barrier")
    ST.stamp(P)
    P.ins("s_branch R_start")
    return P.text()

def part_srd(P):
    P.ins("s_and_b32 s42, s14, 3")
    P.ins("s_lshl_b32 s43, s15, 2")
    P.ins("s_add_u32 s42, s42, s43")
    P.ins("s_mul_i32 s42, s42, 245760")
    P.ins("s_add_u32 s42, s42, 0x2000000")
    P.ins("s_add_u32 s6, s98, s42"); P.ins("s_addc_u32 s7, s99, 0")
    srd(P, 28, 6, 7, 245760)

def gen_loader():
    P = Prog()
    P.label("A_loader")
    tags = {}
    ST = Stamper(); ST.stamp(P)
    P.ins("v_lshrrev_b32 v1, 4, v0")
    P.ins("v_and_b32 v2, 15, v0")
    P.ins("v_lshlrev_b32 v8, 4, v0")
    def vstage(bf, i):
        n = bf * 16 + i
        if n < 58: return vr(24 + 4 * n, 4)
        return ar(4 * (n - 58), 4)
    bufof = {}
    def toreg(n, bf):
        bufof[n] = bf
        sr = "s[24:27]" if n < 8 else "s[28:31]"
        for g in range(4):
            P.wait_vm(P.vm_issued - (LIM - 4))
            P.ins("s_mov_b32 s40, %d" % ((n % 8) * 16384 + g * 4096))
            for i in range(4):
                tags[n] = P.vm("buffer_load_dwordx4 %s, v8, %s, s40 offen offset:%d nt" % (vstage(bf, 4 * g + i), sr, i * 1024))
    for i in range(4):
        P.ins("v_add_u32 v3, %d, v1" % (4 * i))
        P.ins("v_xor_b32 v3, v3, v2")
        P.ins("v_lshlrev_b32 v3, 4, v3")
        P.ins("v_lshl_add_u32 v%d, v1, 8, v3" % (4 + i))
        P.ins("v_add_u32 v%d, 0x10000, v%d" % (12 + i, 4 + i))
    P.ins("v_lshlrev_b32 v3, 2, v1")
    P.ins("v_xor_b32 v3, v3, v2")
    P.ins("v_lshlrev_b32 v3, 4, v3")
    P.ins("v_lshl_add_u32 v9, v1, 8, v3")
    P.ins("v_add_u32 v10, 0x20000, v9")
    LST = int(os.environ.get("LST", "0"))
    def dump(n):
        if LST: ST.stamp(P)
        P.wait_vm(tags[n])
        if LST: ST.stamp(P)
        bf = bufof[n]
        for i in range(16):
            if n < 8:
                a = (4 if n < 4 else 12) + (i & 3)
                P.ds("ds_write_b128 v%d, %s offset:%d" % (a, vstage(bf, i), (n % 4) * 16384 + i * 1024))
            elif n < 10:
                P.ds("ds_write_b128 v10, %s offset:%d" % (vstage(bf, i), (n - 8) * 16384 + i * 1024))
            else:
                P.ds("ds_write_b128 v9, %s offset:%d" % (vstage(bf, i), (n - 10) * 16384 + i * 1024))
        P.wait_ds_all()
    def vdma(j):
        for g in range(4):
            P.wait_vm(P.vm_issued - (LIM2 - 4))
            P.ins("s_mov_b32 m0, %d" % ((j - 2) * 16384 + g * 4096))
            P.ins("s_mov_b32 s40, %d" % (j * 16384 + g * 4096))
            for i in range(4):
                tags[8 + j] = P.vm("buffer_load_dwordx4 v9, s[28:31], s40 offen offset:%d nt lds" % (i * 1024))
    def bar():
        P.ins("s_barrier")
        if not LST: ST.stamp(P)
    srd(P, 32, 96, 97, 256)
    P.ins("s_add_u32 s4, s98, 0x3000000"); P.ins("s_addc_u32 s5, s99, 0")
    srd(P, 20, 4, 5, 0x20000)
    P.ins("s_and_b32 s40, s2, 7")
    P.ins("s_and_b32 s41, s14, 3")
    P.ins("s_lshl_b32 s42, s15, 3")
    P.ins("s_add_u32 s42, s42, s40")
    P.ins("s_lshl_b32 s36, s42, 8")
    P.ins("s_lshl_b32 s42, s15, 2")
    P.ins("s_add_u32 s42, s42, s41")
    P.ins("s_lshl_b32 s42, s42, 8")
    P.ins("s_add_u32 s37, s42, 0x10000")
    P.ins("s_lshl_b32 s41, s41, 2")
    P.ins("s_add_u32 s38, s36, s41")
    P.ins("s_lshl_b32 s40, s40, 2")
    P.ins("s_add_u32 s39, s37, s40")
    if IPF == 1:
        P.ins("s_getpc_b64 s[4:5]")
        P.label("L_pc")
        P.ins("s_sub_u32 s4, s4, L_pc-%s" % KNAME)
        P.ins("s_subb_u32 s5, s5, 0")
        P.ins("s_lshr_b32 s6, s2, 3")
        P.ins("s_and_b32 s6, s6, 7")
        P.ins("s_cmp_ge_u32 s6, 6")
        P.ins("s_cselect_b32 s6, 0, s6")
        P.ins("s_lshl_b32 s6, s6, 13")
        P.ins("v_lshlrev_b32 v20, 7, v0")
        P.ins("v_add_u32 v20, s6, v20")
        P.ins("v_min_u32 v20, A_end-%s, v20" % KNAME)
        P.vm("global_load_dword v11, v20, s[4:5]")
    P.ins("s_cmp_eq_u32 s2, 0")
    P.ins("s_cbranch_scc0 L_noclr")
    for r in range(4): P.ins("v_mov_b32 v%d, 0" % (16 + r))
    P.ins("v_lshlrev_b32 v20, 8, v0")
    P.ins("v_add_u32 v21, 0x10000, v20")
    P.ins("buffer_store_dwordx4 v[16:19], v20, s[20:23], 0 offen sc1")
    P.ins("buffer_store_dwordx4 v[16:19], v21, s[20:23], 0 offen sc1")
    P.ins("buffer_store_dwordx4 v[16:19], v21, s[20:23], 0 offen offset:16 sc1")
    P.ins("v_mov_b32 v17, 1")
    P.ins("s_waitcnt vmcnt(0)")
    P.ins("v_cmp_eq_u32 vcc, 0, v0")
    P.ins("s_and_saveexec_b64 s[18:19], vcc")
    P.ins("buffer_store_dword v17, v16, s[32:35], 0 offen sc1")
    P.ins("s_mov_b64 exec, s[18:19]")
    P.ins("s_waitcnt vmcnt(0)")
    P.label("L_noclr")
    if not LST: ST.stamp(P)
    global LIM
    sv = LIM; LIM = PLIM
    for n in range(PRE): toreg(n, n)
    LIM = sv
    bar()
    for n in range(PRE, PRE + 3): toreg(n, n)
    bar()
    for n in range(PRE + 3, 7): toreg(n, n)
    bar()
    dump(0); bar()
    dump(1); dump(2); bar()
    toreg(7, 0); dump(3); toreg(8, 1); dump(4); bar()
    toreg(9, 2); dump(5); toreg(10, 3); dump(6); bar()
    toreg(11, 4); dump(7); bar()
    toreg(12, 5); dump(8); toreg(13, 6); dump(9); bar()
    vdma(6); dump(10); vdma(7)
    for jj in range(5):
        P.ins("v_add_u32 v21, %d, v0" % (64 * jj))
        P.ins("v_mul_u32_u24 v22, 205, v21")
        P.ins("v_lshrrev_b32 v22, 12, v22")
        P.ins("v_mul_u32_u24 v23, 20, v22")
        P.ins("v_sub_u32 v21, v21, v23")
        P.ins("v_mul_u32_u24 v22, 1280, v22")
        P.ins("v_lshl_add_u32 v%d, v21, 4, v22" % (16 + jj))
    P.ins("s_and_b32 s45, s14, 3")
    P.ins("s_lshl_b32 s45, s45, 3")
    if TLBW:
        P.ins("v_mov_b32 v21, 0")
        P.ins("s_lshl_b32 s40, s15, 5")
        P.ins("s_add_u32 s40, s40, s14")
        P.ins("s_mul_i32 s40, s40, 24576")
        P.ins("s_and_b32 s42, s14, 3")
        P.ins("s_lshl_b32 s43, s15, 2")
        P.ins("s_add_u32 s42, s42, s43")
        P.ins("s_mul_i32 s42, s42, 245760")
        P.ins("s_and_b32 s43, s2, 7")
        P.ins("s_mul_i32 s43, s43, 30720")
        P.ins("s_add_u32 s42, s42, s43")
        P.ins("s_add_u32 s42, s42, 0x2000000")
        P.ins("s_mul_i32 s43, s15, 122880")
        srd(P, 8, 98, 99, 0x4000000)
        srd(P, 4, 100, 101, 983040)
        P.ins("s_mov_b64 exec, 1")
        P.vm("buffer_load_dword v11, v21, s[8:11], s40 offen")
        P.vm("buffer_load_dword v11, v21, s[8:11], s42 offen sc1")
        P.vm("buffer_load_dword v11, v21, s[20:23], s36 offen sc1")
        P.vm("buffer_load_dword v11, v21, s[4:7], s43 offen")
        P.ins("s_mov_b64 exec, -1")
    if WTOUCH:
        P.ins("s_lshl_b32 s40, s15, 2")
        P.ins("s_and_b32 s41, s14, 3")
        P.ins("s_add_u32 s40, s40, s41")
        P.ins("s_mul_i32 s40, s40, 20480")
        P.ins("s_mul_i32 s41, s41, 320")
        P.ins("s_sub_u32 s40, s40, s41")
        P.ins("v_lshlrev_b32 v21, 7, v0")
        P.ins("v_add_u32 v22, 8192, v21")
        P.ins("v_and_b32 v23, 31, v0")
        P.ins("v_lshlrev_b32 v23, 7, v23")
        P.ins("v_add_u32 v23, 16384, v23")
        for n in range(3):
            P.vm("buffer_load_dword v11, v%d, s[48:51], s40 offen" % (21 + n))
    def wog(pos):
        P.wait_vm(P.vm_issued - 55)
        P.ins("s_add_u32 s40, s45, %d" % ((pos - 20) & 31))
        P.ins("s_and_b32 s40, s40, 31")
        P.ins("s_mul_i32 s40, s40, 20480")
        for jj in range(5):
            P.ins("s_mov_b32 m0, %d" % (pos * 5120 + jj * 1024))
            tags[('wo', pos)] = P.vm("buffer_load_dwordx4 v%d, s[48:51], s40 offen lds" % (16 + jj))
    P.ins("s_load_dword s47, s[96:97], 0")
    dump(11); bar()
    dump(12); bar()
    wog(20); wog(21)
    dump(13); bar()
    wog(22); wog(23); wog(24)
    P.wait_vm(tags[14]); bar()
    wog(25); wog(26); wog(27)
    P.wait_vm(tags[15]); bar()
    NW7 = int(os.environ.get("NW7", "8"))
    rest = [28, 29, 30, 31] + list(range(20))
    for pos in rest[:NW7]: wog(pos)
    part_srd(P)
    P.wait_vm(tags[('wo', 27)])
    bar()
    for pos in rest[NW7:]: wog(pos)
    SLP = int(os.environ.get("SLP", "4"))
    P.ins("s_cmp_ge_u32 s47, 1")
    P.ins("s_cbranch_scc1 C_done")
    P.ins("v_mov_b32 v2, 0")
    P.ins("s_mov_b32 s56, 0")
    P.label("C_poll")
    P.ins("buffer_load_dword v1, v2, s[32:35], 0 offen sc1")
    P.ins("s_waitcnt vmcnt(0)")
    P.ins("v_readfirstlane_b32 s57, v1")
    P.ins("s_add_u32 s56, s56, 1")
    P.ins("s_cmp_ge_u32 s56, 0x40000")
    P.ins("s_cbranch_scc1 C_done")
    P.ins("s_cmp_ge_u32 s57, 1")
    P.ins("s_cbranch_scc1 C_done")
    P.ins("s_sleep 16")
    P.ins("s_branch C_poll")
    P.label("C_done")
    def sync(slot, line, msk, nm, pr):
        P.ins("v_mov_b32 v1, 1")
        P.ins("v_mov_b32 v3, 0")
        P.ins("v_and_b32 v2, %d, v0" % msk)
        P.ins("v_lshlrev_b32 v2, 2, v2")
        P.ins("v_cmp_eq_u32 vcc, 0, v0")
        bar()
        P.ins("s_and_saveexec_b64 s[18:19], vcc")
        P.ins("buffer_store_dword v1, v3, s[20:23], %s offen sc1" % slot)
        P.ins("s_mov_b64 exec, s[18:19]")
        P.ins("s_mov_b32 s46, 0")
        NPL = int(os.environ.get("NPL", "4"))
        for k in range(NPL):
            P.ins("buffer_load_dword v%d, v2, s[20:23], %s offen sc1" % (pr + k, line))
            if k < NPL - 1: P.ins("s_sleep %d" % SLP)
        P.label(nm + "_poll")
        for k in range(NPL):
            P.ins("s_waitcnt vmcnt(%d)" % (NPL - 1))
            P.ins("v_cmp_ne_u32 vcc, 1, v%d" % (pr + k))
            P.ins("s_nop 1")
            P.ins("s_cmp_eq_u64 vcc, 0")
            P.ins("s_cbranch_scc1 %s_done" % nm)
            P.ins("buffer_load_dword v%d, v2, s[20:23], %s offen sc1" % (pr + k, line))
        P.ins("s_add_u32 s46, s46, 1")
        P.ins("s_cmp_lt_u32 s46, 0x10000")
        P.ins("s_cbranch_scc1 %s_poll" % nm)
        P.label(nm + "_done")
        if not LST: ST.stamp(P)
        if INV:
            P.ins("buffer_inv sc1")
            P.ins("s_waitcnt vmcnt(0)")
        bar()
        P.vm_done = P.vm_issued
    sync("s38", "s36", 3, "S1", 100)
    sync("s39", "s37", 7, "S2", 110)
    return P.text()

def gen_final():
    P = Prog()
    P.label("R_start")
    P.ins("s_and_b32 s40, s2, 7")
    P.ins("s_lshl_b32 s40, s40, 2")
    P.ins("s_add_u32 s40, s40, s16")
    P.ins("s_cmp_ge_u32 s40, 30")
    P.ins("s_cbranch_scc1 %s" % ("R_dump" if STAMP else "A_end"))
    ST = Stamper(); ST.n = 28
    P.ins("v_lshlrev_b32 v1, 4, v0")
    P.ins("s_lshl_b32 s41, s40, 10")
    tg = []
    for p in range(8):
        tg.append(P.vm("buffer_load_dwordx4 %s, v1, s[28:31], s41 offen sc1" % vr(32 + 4 * p, 4)))
        if p < 7: P.ins("s_add_u32 s41, s41, 30720")
    P.ins("s_mul_i32 s42, s15, 122880")
    P.ins("s_and_b32 s43, s14, 3")
    P.ins("s_mul_i32 s43, s43, 320")
    P.ins("s_add_u32 s42, s42, s43")
    P.ins("s_add_u32 s4, s100, s42"); P.ins("s_addc_u32 s5, s101, 0")
    P.ins("s_sub_u32 s42, 983040, s42")
    srd(P, 20, 4, 5, "s42")
    P.ins("s_mul_i32 s42, s40, 26")
    P.ins("s_lshr_b32 s42, s42, 8")
    P.ins("s_mul_i32 s43, s42, 10")
    P.ins("s_sub_u32 s43, s40, s43")
    P.ins("s_mul_i32 s42, s42, 40960")
    P.ins("s_lshl_b32 s43, s43, 5")
    P.ins("s_add_u32 s42, s42, s43")
    P.ins("v_and_b32 v2, 31, v0")
    P.ins("v_lshrrev_b32 v3, 5, v0")
    P.ins("v_mul_u32_u24 v2, 1280, v2")
    P.ins("v_lshl_add_u32 v2, v3, 4, v2")
    P.wait_vm(tg[0])
    for r in range(4):
        P.ins("v_lshlrev_b32 v%d, 16, v%d" % (24 + 2 * r, 32 + r))
        P.ins("v_and_b32 v%d, 0xffff0000, v%d" % (25 + 2 * r, 32 + r))
    for p in range(1, 8):
        P.wait_vm(tg[p])
        t = 64 + 8 * (p & 1)
        for r in range(4):
            P.ins("v_lshlrev_b32 v%d, 16, v%d" % (t + 2 * r, 32 + 4 * p + r))
            P.ins("v_and_b32 v%d, 0xffff0000, v%d" % (t + 1 + 2 * r, 32 + 4 * p + r))
        for r in range(4):
            P.ins("v_pk_add_f32 %s, %s, %s" % (vr(24 + 2 * r, 2), vr(24 + 2 * r, 2), vr(t + 2 * r, 2)))
    for p in range(4):
        P.ins("v_cvt_pk_bf16_f32 v%d, v%d, v%d" % (4 + p, 24 + 2 * p, 24 + 2 * p + 1))
    P.vm("buffer_store_dwordx4 v[4:7], v2, s[20:23], s42 offen")
    ST.n = 29
    if STAMP:
        P.wait_vm_all()
        ST.stamp(P)
        P.label("R_dump")
        ST.dump(P, 200, 0)
    return P.text()

def gen_oproj():
    P = Prog()
    tags = {}
    ST = Stamper()
    if FUSED:
        P.label("O_start")
        P.ins("s_load_dwordx4 s[4:7], s[0:1], 32")
        P.ins("s_load_dwordx4 s[8:11], s[0:1], 48")
        if STAMP: P.ins("s_memrealtime s[58:59]")
        P.ins("s_waitcnt vmcnt(0) lgkmcnt(0)")
        P.ins("s_barrier")
        srd(P, 12, 8, 9, 256)
        P.ins("s_mov_b32 s8, s10"); P.ins("s_mov_b32 s9, s11")
        P.ins("s_cmp_eq_u32 s16, 0")
        P.ins("s_cbranch_scc0 O_nosig")
        P.ins("s_lshr_b32 s17, s2, 5")
        P.ins("s_lshl_b32 s17, s17, 5")
        P.ins("v_mov_b32 v1, 1")
        P.ins("v_mov_b32 v2, s17")
        P.ins("v_cmp_eq_u32 vcc, 0, v0")
        P.ins("s_and_saveexec_b64 s[18:19], vcc")
        P.ins("buffer_atomic_add v1, v2, s[12:15], 0 offen sc1")
        P.ins("s_mov_b64 exec, s[18:19]")
        P.label("O_nosig")
        P.ins("s_cmp_ge_u32 s2, 240")
        P.ins("s_cbranch_scc1 O_end")
        P.ins("s_mov_b32 s50, s16")
        P.ins("s_mov_b32 s[52:53], s[12:13]".replace("s_mov_b32", "s_mov_b64"))
        P.ins("s_mov_b64 s[54:55], s[14:15]")
    else:
        P.raw(".globl oproj_kernel\n.p2align 8\n.type oproj_kernel,@function\noproj_kernel:")
        P.ins("s_cmp_ge_u32 s2, 240")
        P.ins("s_cbranch_scc1 O_end")
        P.ins("s_load_dwordx4 s[4:7], s[0:1], 32")
        P.ins("s_load_dwordx2 s[8:9], s[0:1], 56")
        if STAMP: P.ins("s_memrealtime s[58:59]")
    P.ins("s_and_b32 s14, s2, 7")
    P.ins("s_lshr_b32 s15, s2, 3")
    P.ins("s_mul_i32 s16, s15, 52")
    P.ins("s_lshr_b32 s16, s16, 8")
    P.ins("s_mul_i32 s17, s16, 5")
    P.ins("s_sub_u32 s17, s15, s17")
    P.ins("s_mul_i32 s48, s16, 3")
    P.ins("s_mul_i32 s49, s17, 5")
    P.ins("s_add_u32 s48, s48, s49")
    P.ins("s_lshr_b32 s18, s14, 1")
    P.ins("s_mul_i32 s18, s18, 192")
    P.ins("s_lshl_b32 s19, s16, 5")
    P.ins("s_add_u32 s18, s18, s19")
    P.ins("s_and_b32 s19, s14, 1")
    P.ins("s_mul_i32 s19, s19, 320")
    P.ins("s_lshl_b32 s17, s17, 6")
    P.ins("s_add_u32 s19, s19, s17")
    if FUSED:
        P.ins("s_mul_i32 s51, s18, 683")
        P.ins("s_lshr_b32 s51, s51, 16")
        P.ins("s_lshl_b32 s51, s51, 5")
        P.ins("s_mov_b32 s16, s50")
    else:
        P.ins("v_lshrrev_b32 v1, 6, v0")
        P.ins("v_and_b32 v0, 63, v0")
        P.ins("s_nop 0")
        P.ins("v_readfirstlane_b32 s16, v1")
    P.ins("s_lshl_b32 s40, s18, 13")
    P.ins("s_lshl_b32 s45, s16, 11")
    P.ins("s_add_u32 s40, s40, s45")
    P.ins("s_mul_i32 s41, s18, 1280")
    P.ins("s_lshl_b32 s42, s19, 1")
    P.ins("s_add_u32 s41, s41, s42")
    P.ins("s_mul_i32 s43, s16, %d" % (1024 * 1280))
    P.ins("s_add_u32 s43, s43, s42")
    P.ins("s_mul_i32 s46, s16, 40960")
    P.ins("v_and_b32 v18, 31, v0")
    P.ins("v_lshrrev_b32 v19, 5, v0")
    P.ins("v_lshrrev_b32 v20, 4, v0")
    P.ins("v_and_b32 v21, 15, v0")
    P.ins("v_lshrrev_b32 v3, 3, v0")
    P.ins("v_bfe_u32 v4, v0, 4, 1")
    P.ins("v_lshlrev_b32 v4, 2, v4")
    P.ins("v_and_b32 v5, 7, v0")
    P.ins("v_xor_b32 v4, v4, v5")
    P.ins("v_lshlrev_b32 v4, 4, v4")
    P.ins("v_mul_u32_u24 v6, 1280, v3")
    P.ins("v_add_u32 v24, v6, v4")
    for i in range(1, 4):
        P.ins("v_add_u32 v%d, %d, v24" % (24 + i, i * (10240 - 1024)))
    for j in range(4):
        P.ins("v_add_u32 v4, %d, v20" % (4 * (j & 1)))
        P.ins("v_xor_b32 v4, v4, v5")
        P.ins("v_lshlrev_b32 v4, 4, v4")
        P.ins("v_lshl_add_u32 v4, v3, 13, v4")
        P.ins("v_add_u32 v%d, %d, v4" % (28 + j, j * (65536 - 1024)))
    P.ins("s_waitcnt lgkmcnt(0)")
    stamp_setup(P, 8, 9, 1)
    ST.stamp(P)
    P.ins("s_add_u32 s4, s4, s43"); P.ins("s_addc_u32 s5, s5, 0")
    P.ins("s_sub_u32 s44, 5242880, s43")
    srd(P, 20, 4, 5, "s44")
    P.ins("s_add_u32 s8, s8, s40"); P.ins("s_addc_u32 s9, s9, 0")
    P.ins("s_sub_u32 s44, %d, s45" % (32 * 8192))
    srd(P, 28, 8, 9, "s44")
    NS = int(os.environ.get('NS', '3'))
    SL = 12288
    DPOS = int(os.environ.get('DPOS', '4'))
    def dma(t, part=3):
        sl = (t % NS) * SL
        P.ins("s_add_u32 s47, s48, %d" % t)
        P.ins("s_and_b32 s47, s47, 15")
        if part & 1:
            P.ins("s_mul_i32 s49, s47, 81920")
            for sub in range(2):
                P.ins("s_add_u32 m0, s46, %d" % (sl + 4096 * sub))
                if sub: P.ins("s_add_u32 s49, s49, 40960")
                for i in range(4):
                    tags[('T', t)] = P.vm("buffer_load_dwordx4 v%d, s[20:23], s49 offen offset:%d lds" % (24 + i, i * 1024))
        if part & 2:
            P.ins("s_lshl_b32 s47, s47, 7")
            P.ins("s_add_u32 m0, s46, %d" % (sl + 8192))
            for j in range(4):
                tags[('T', t)] = P.vm("buffer_load_dwordx4 v%d, s[28:31], s47 offen offset:%d lds" % (28 + j, j * 1024))
    ST.stamp(P)
    if FUSED:
        for t in range(NS): dma(t, 1)
        ST.stamp(P)
        P.ins("s_cmp_eq_u32 s16, 0")
        P.ins("s_cbranch_scc0 O_nopoll")
        P.ins("v_mov_b32 v2, s51")
        P.ins("s_mov_b32 s56, 0")
        P.label("O_poll")
        P.ins("buffer_load_dword v1, v2, s[52:55], 0 offen sc1")
        P.ins("s_waitcnt vmcnt(0)")
        P.ins("v_readfirstlane_b32 s57, v1")
        P.ins("s_add_u32 s56, s56, 1")
        P.ins("s_cmp_ge_u32 s56, 0x40000")
        P.ins("s_cbranch_scc1 O_pdone")
        P.ins("s_cmp_ge_u32 s57, 32")
        P.ins("s_cbranch_scc1 O_pdone")
        P.ins("s_sleep 4")
        P.ins("s_branch O_poll")
        P.label("O_pdone")
        P.ins("buffer_inv sc1")
        P.ins("s_waitcnt vmcnt(0)")
        P.label("O_nopoll")
        P.ins("s_barrier")
        ST.stamp(P)
        for t in range(NS): dma(t, 2)
    else:
        for t in range(NS): dma(t)
    P.ins("s_add_u32 s6, s6, s41"); P.ins("s_addc_u32 s7, s7, 0")
    P.ins("s_sub_u32 s44, 983040, s41")
    srd(P, 24, 6, 7, "s44")
    P.ins("v_and_b32 v6, 1, v0")
    P.ins("v_bfe_u32 v7, v0, 1, 1")
    P.ins("v_lshrrev_b32 v8, 2, v21")
    P.ins("v_and_b32 v9, 1, v20")
    P.ins("v_lshl_or_b32 v9, v9, 1, v6")
    P.ins("v_lshlrev_b32 v9, 4, v9")
    P.ins("v_lshl_add_u32 v9, v7, 3, v9")
    P.ins("v_lshrrev_b32 v10, 1, v20")
    P.ins("v_lshl_add_u32 v10, v10, 3, v8")
    P.ins("v_lshl_add_u32 v9, v10, 7, v9")
    P.ins("v_add_u32 v9, s46, v9")
    P.ins("v_bfe_u32 v10, v0, 3, 1")
    for nb in range(2):
        P.ins("v_xor_b32 v11, %d, v10" % nb)
        P.ins("v_lshl_add_u32 v%d, v11, 6, v9" % (12 + nb))
    P.ins("v_bfe_u32 v6, v0, 1, 3")
    P.ins("v_lshlrev_b32 v7, 7, v18")
    P.ins("v_add_u32 v7, s46, v7")
    for ks in range(4):
        P.ins("v_add_u32 v8, %d, v19" % (2 * ks))
        P.ins("v_xor_b32 v8, v8, v6")
        P.ins("v_lshl_add_u32 v%d, v8, 4, v7" % (14 + ks))
    ACC = 32
    FR = 64
    FB = 96
    ST.stamp(P)
    for t in range(16):
        sl = (t % NS) * SL
        P.wait_vm(tags[('T', t)])
        if t == 0: ST.stamp(P)
        seq = []
        for ks in range(4):
            seq.append(Item("ds_read_b128 %s, v%d offset:%d" % (vr(FB + 4 * ks, 4), 14 + ks, sl + 8192), 'ds'))
            for nb in range(2):
                for r2 in range(2):
                    seq.append(Item("ds_read_b64_tr_b16 %s, v%d offset:%d" % (
                        vr(FR + (ks * 2 + nb) * 4 + 2 * r2, 2), 12 + nb,
                        sl + (ks >> 1) * 4096 + (ks & 1) * 2048 + r2 * 512), 'ds', tag=('r', t, ks, nb)))
        n = 0
        for ks in range(4):
            for nb in range(2):
                c = "0" if (t == 0 and ks == 0) else vr(ACC + 16 * nb, 16)
                seq.append(Item("v_mfma_f32_32x32x16_bf16 %s, %s, %s, %s" % (
                    vr(ACC + 16 * nb, 16), vr(FR + (ks * 2 + nb) * 4, 4), vr(FB + 4 * ks, 4), c),
                    need=[('r', t, ks, nb)]))
                n += 1
                if n == DPOS and t + NS < 16:
                    def f(t=t):
                        P.wait_ds_all()
                        dma(t + NS)
                    seq.append(f)
        emit(P, seq, tags)
        if t % 2 == 1: ST.stamp(P)
    P.ins("v_lshlrev_b32 v4, 4, v0")
    P.ins("v_add_u32 v5, s46, v4")
    for j in range(8):
        P.ds("ds_write_b128 v5, %s offset:%d" % (vr(ACC + 4 * j, 4), j * 1024))
    P.wait_ds_all()
    P.ins("s_barrier")
    P.ins("s_lshl_b32 s47, s16, 11")
    P.ins("v_add_u32 v5, s47, v4")
    P.ins("v_add_u32 v6, 81920, v5")
    for w in range(4):
        for q in range(2):
            a = "v5" if w < 2 else "v6"
            P.ds("ds_read_b128 %s, %s offset:%d" % (vr(64 + 8 * w + 4 * q, 4), a, (w % 2) * 40960 + q * 1024))
    P.wait_ds_all()
    for r in range(8):
        P.ins("v_add_f32 v%d, v%d, v%d" % (64 + r, 64 + r, 72 + r))
        P.ins("v_add_f32 v%d, v%d, v%d" % (80 + r, 80 + r, 88 + r))
    for r in range(8):
        P.ins("v_add_f32 v%d, v%d, v%d" % (64 + r, 64 + r, 80 + r))
    for p in range(4):
        P.ins("v_cvt_pk_bf16_f32 v%d, v%d, v%d" % (96 + p, 64 + 2 * p, 64 + 2 * p + 1))
    P.ins("v_mul_u32_u24 v7, 1280, v18")
    P.ins("v_lshl_add_u32 v7, v19, 4, v7")
    P.ins("s_lshl_b32 s47, s16, 5")
    P.ins("v_add_u32 v7, s47, v7")
    P.vm("buffer_store_dwordx4 v[96:99], v7, s[24:27], 0 offen")
    ST.stamp(P)
    if STAMP: P.wait_vm_all()
    ST.stamp(P)
    ST.dump(P, 100, 1)
    P.label("O_end")
    P.ins("s_endpgm")
    return P.text()

HEAD = """; Kernarg layout for this problem (64 bytes, ptrs only, base s[0:1]):
;   0 x, 8 k_cache, 16 v_cache, 24 wq, 32 wo, 40 out, 48 debug, 56 ws
""" + ("""; @launch grid=(256,1,1) block=(256,1,1) lds=163840
""" if FUSED else """; @launch kernel=attn_kernel grid=(256,1,1) block=(256,1,1) lds=163840
; @launch kernel=oproj_kernel grid=(240,1,1) block=(256,1,1) lds=163840
""") + """.amdgcn_target "amdgcn-amd-amdhsa--gfx950"
.text
"""
def kd(name, vg, acc):
    return """.amdhsa_kernel %s
  .amdhsa_next_free_vgpr %d
  .amdhsa_next_free_sgpr 102
  .amdhsa_accum_offset %d
  .amdhsa_group_segment_fixed_size 0
  .amdhsa_kernarg_size 64
  .amdhsa_user_sgpr_count 2
  .amdhsa_user_sgpr_kernarg_segment_ptr 1
  .amdhsa_system_sgpr_workgroup_id_x 1
.end_amdhsa_kernel
""" % (name, vg, acc)

if __name__ == "__main__":
    a, n1 = pad_hazards(gen_attn())
    o, n2 = "", 0
    print("pads", n1, n2, file=sys.stderr)
    s = HEAD + a + "\n" + o + '\n.section .rodata,"a"\n.p2align 6\n' + kd(KNAME, 512, 256) + ("" if FUSED else ".p2align 6\n" + kd("oproj_kernel", 128, 128))
    open(sys.argv[1], "w").write(s)
```

```python
import sys
from asmlib import *

NVREG = 6
WBASE = 131072
SC = 0.08838834764831845 * 1.4426950408889634
import struct
def f32bits(x): return struct.unpack('<I', struct.pack('<f', x))[0]

def vr(b, n=1): return "v%d" % b if n == 1 else "v[%d:%d]" % (b, b + n - 1)
def ar(b, n=1): return "a%d" % b if n == 1 else "a[%d:%d]" % (b, b + n - 1)

class Item:
    def __init__(self, t, k='x', tag=None, need=(), needvm=()):
        self.t = t; self.k = k; self.tag = tag; self.need = need; self.needvm = needvm

def emit(P, items, tags):
    for it in items:
        if callable(it):
            it(); continue
        for n in it.need: P.wait_ds(tags[n])
        for n in it.needvm: P.wait_vm(tags[n])
        if it.k == 'ds':
            tg = P.ds(it.t)
        elif it.k == 'vm':
            tg = P.vm(it.t)
        else:
            P.ins(it.t); tg = None
        if it.tag is not None: tags[it.tag] = tg

import os
STAMP = int(os.environ.get("STAMP", "0"))
LIM = int(os.environ.get("LIM", "64"))
PX = ""
B0E = int(os.environ.get("B0E", "0"))
WTOUCH = int(os.environ.get("WTOUCH", "1"))
FUSED = int(os.environ.get("FUSED", "1"))
KNAME = "standalone__gqa_block_cached__near_ridge_kernel" if FUSED else "attn_kernel"
PRE = int(os.environ.get("PRE", "0"))
INV = int(os.environ.get("INV", "0"))
PKF = int(os.environ.get("PKF", "0"))
IPF = int(os.environ.get("IPF", "1"))
TLBW = int(os.environ.get("TLBW", "1"))
OIL = int(os.environ.get("OIL", "1"))
PLIM = int(os.environ.get("PLIM", "16"))
LIM2 = int(os.environ.get("LIM2", "64"))
class Stamper:
    def __init__(self): self.n = 0
    def stamp(self, P):
        if not STAMP: return
        P.wait_ds_all()
        P.ins("s_memtime s[56:57]")
        P.ins("s_waitcnt lgkmcnt(0)")
        P.ins("s_mov_b32 s%d, s56" % (64 + self.n))
        self.n += 1
        assert self.n <= 30
    def dump(self, P, vtmp, kern):
        if not STAMP: return
        P.ins("v_mov_b32 v%d, 0" % vtmp)
        for i in range(30):
            P.ins("v_writelane_b32 v%d, s%d, %d" % (vtmp, 64 + i, i))
        P.ins("v_writelane_b32 v%d, s58, 30" % vtmp)
        P.ins("s_memrealtime s[56:57]")
        P.ins("s_waitcnt lgkmcnt(0)")
        P.ins("v_writelane_b32 v%d, s56, 31" % vtmp)
        P.ins("s_lshl_b32 s56, s2, 2")
        P.ins("s_add_u32 s56, s56, s16")
        P.ins("s_lshl_b32 s56, s56, 7")
        P.ins("v_lshlrev_b32 v%d, 2, v0" % (vtmp + 1))
        P.ins("v_cmp_gt_u32 vcc, 32, v0")
        P.ins("s_and_saveexec_b64 s[54:55], vcc")
        P.ins("buffer_store_dword v%d, v%d, s[60:63], s56 offen offset:0" % (vtmp, vtmp + 1))
        P.ins("s_mov_b64 exec, s[54:55]")
def stamp_setup(P, wslo, wshi, kern):
    if not STAMP: return
    P.ins("s_add_u32 s60, s%d, 0x%x" % (wslo, (16 + 1 * kern) << 20))
    P.ins("s_addc_u32 s61, s%d, 0" % wshi)
    P.ins("s_and_b32 s61, s61, 0xffff")
    P.ins("s_mov_b32 s62, 0x100000")
    P.ins("s_mov_b32 s63, 0x00020000")

def srd(P, d, blo, bhi, size):
    P.ins("s_mov_b32 s%d, s%d" % (d, blo))
    P.ins("s_and_b32 s%d, s%d, 0xffff" % (d + 1, bhi))
    if isinstance(size, str): P.ins("s_mov_b32 s%d, %s" % (d + 2, size))
    else: P.ins("s_mov_b32 s%d, 0x%x" % (d + 2, size))
    P.ins("s_mov_b32 s%d, 0x00020000" % (d + 3))

def gen_attn():
    P = Prog()
    P.raw(".globl %s\n.p2align 8\n.type %s,@function\n%s:" % (KNAME, KNAME, KNAME))
    P.ins("s_cmp_ge_u32 s2, 256")
    P.ins("s_cbranch_scc1 A_end")
    if IPF == 2:
        P.ins("s_getpc_b64 s[40:41]")
        P.label("L_pc0")
        P.ins("s_sub_u32 s40, s40, L_pc0-%s" % KNAME)
        P.ins("s_subb_u32 s41, s41, 0")
        P.ins("s_bfe_u32 s42, s2, 0x10003")
        P.ins("s_lshl_b32 s42, s42, 15")
        P.ins("v_lshlrev_b32 v1, 7, v0")
        P.ins("v_add_u32 v1, s42, v1")
        P.ins("v_min_u32 v1, A_end-%s, v1" % KNAME)
        P.ins("global_load_dword v100, v1, s[40:41]")
    P.ins("s_load_dwordx4 s[4:7], s[0:1], 0")
    P.ins("s_load_dwordx4 s[8:11], s[0:1], 16")
    P.ins("s_load_dwordx2 s[12:13], s[0:1], 56")
    P.ins("s_load_dwordx2 s[52:53], s[0:1], 32")
    P.ins("s_load_dwordx4 s[96:99], s[0:1], 48")
    P.ins("s_load_dwordx2 s[100:101], s[0:1], 40")
    if STAMP:
        P.ins("s_memrealtime s[58:59]")
        for i in range(30): P.ins("s_mov_b32 s%d, 0" % (64 + i))
    P.ins("s_and_b32 s14, s2, 7")
    P.ins("s_lshl_b32 s14, s14, 2")
    P.ins("s_bfe_u32 s15, s2, 0x20003")
    P.ins("s_add_u32 s14, s14, s15")
    P.ins("s_lshr_b32 s15, s2, 5")
    P.ins("v_lshrrev_b32 v1, 6, v0")
    P.ins("v_and_b32 v0, 63, v0")
    P.ins("s_nop 0")
    P.ins("v_readfirstlane_b32 s16, v1")
    P.ins("s_lshl_b32 s17, s15, 5")
    P.ins("s_add_u32 s17, s17, s14")
    P.ins("s_mul_i32 s41, s17, 24576")
    P.ins("s_lshl_b32 s17, s17, 17")
    P.ins("s_mul_i32 s18, s15, 122880")
    P.ins("s_lshl_b32 s19, s14, 8")
    P.ins("s_and_b32 s42, s2, 7")
    P.ins("s_mul_i32 s42, s42, 655360")
    P.ins("s_and_b32 s43, s14, 3")
    P.ins("s_mul_i32 s43, s43, 320")
    P.ins("s_add_u32 s42, s42, s43")
    P.ins("s_waitcnt lgkmcnt(0)")
    stamp_setup(P, 12, 13, 0)
    P.ins("s_add_u32 s52, s52, s42"); P.ins("s_addc_u32 s53, s53, 0")
    P.ins("s_sub_u32 s42, 5242880, s42")
    srd(P, 48, 52, 53, "s42")
    P.ins("s_add_u32 s4, s4, s18"); P.ins("s_addc_u32 s5, s5, 0")
    srd(P, 20, 4, 5, 122880)
    P.ins("s_add_u32 s6, s6, s17"); P.ins("s_addc_u32 s7, s7, 0")
    srd(P, 24, 6, 7, 131072)
    P.ins("s_add_u32 s8, s8, s17"); P.ins("s_addc_u32 s9, s9, 0")
    srd(P, 28, 8, 9, 131072)
    P.ins("s_add_u32 s10, s10, s19"); P.ins("s_addc_u32 s11, s11, 0")
    P.ins("s_sub_u32 s42, 5242880, s19")
    srd(P, 32, 10, 11, "s42")
    P.ins("s_add_u32 s12, s12, s41"); P.ins("s_addc_u32 s13, s13, 0")
    srd(P, 36, 12, 13, 24576)
    P.ins("s_cmp_eq_u32 s16, 3")
    P.ins("s_cbranch_scc1 A_loader")
    pre = P.text()
    comp = gen_compute()
    load = gen_loader()
    return pre + comp + load + gen_final() + "A_end:\n    s_endpgm\n"

AK = 1
AV = 9
VO = 13
VM = 14
VL0 = 15; VL1 = 16
VMC = 17
VT = 18
QF = 24
SB = 56
TMP = 248
XF = 24
QACC = 184
AS = 0
AO = 64
AF = 128

def Sreg(kb, r=0, n=16):
    if kb < 12: return vr(SB + 16 * kb + r, n)
    return ar(AS + 16 * (kb - 12) + r, n)

def gen_compute():
    P = Prog()
    tags = {}
    ST = Stamper(); ST.stamp(P)
    P.ins("v_and_b32 v18, 31, v0")
    P.ins("v_lshrrev_b32 v19, 5, v0")
    P.ins("v_lshrrev_b32 v20, 4, v0")
    P.ins("v_and_b32 v21, 15, v0")
    P.ins("s_lshl_b32 s40, s16, 5")
    P.ins("v_add_u32 v22, s40, v18")
    P.ins("v_lshlrev_b32 v%d, 13, v22" % VO)
    P.ins("v_lshl_add_u32 v%d, v19, 4, v%d" % (VO, VO))
    P.ins("v_lshlrev_b32 v249, 2, v20")
    P.ins("v_xor_b32 v249, v21, v249")
    P.ins("v_lshlrev_b32 v249, 4, v249")
    P.ins("v_lshl_add_u32 v248, v20, 13, v249")
    def wtile(T):
        if T is None:
            P.ins("s_lshl_b32 m0, s46, 13")
            P.ins("s_add_u32 s40, s46, s45")
            P.ins("s_cmp_ge_u32 s40, 20")
            P.ins("s_cselect_b32 s41, 20, 0")
            P.ins("s_sub_u32 s40, s40, s41")
            P.ins("s_lshl_b32 s40, s40, 18")
            P.ins("s_add_u32 s46, s46, 1")
        else:
            P.ins("s_mov_b32 m0, %d" % (T * 8192))
            P.ins("s_mov_b32 s40, %d" % (T * 32 * 8192))
        for i in range(8):
            P.vm("buffer_load_dwordx4 v248, s[32:35], s40 offen lds")
            if i < 7:
                P.ins("s_add_u32 m0, m0, 1024")
                P.ins("s_add_u32 s40, s40, 32768")
    P.ins("s_and_b32 s43, s14, 3")
    P.ins("s_add_u32 s43, s43, s15")
    for _ in range(2):
        P.ins("s_cmp_ge_u32 s43, 5")
        P.ins("s_cselect_b32 s40, 5, 0")
        P.ins("s_sub_u32 s43, s43, s40")
    P.ins("s_lshl_b32 s45, s43, 2")
    P.ins("s_lshl_b32 s40, s16, 5")
    for j in range(4):
        P.ins("v_add_u32 v249, %d, v20" % (4 * j))
        P.ins("v_xor_b32 v254, v249, v21")
        P.ins("v_add_u32 v249, s40, v249")
        P.ins("v_mul_u32_u24 v249, 1280, v249")
        P.ins("v_lshl_add_u32 v%d, v254, 4, v249" % (250 + j))
    P.ins("s_add_u32 s47, s16, 1")
    P.ins("s_mul_i32 s47, s47, 40960")
    P.ins("s_mov_b32 m0, s47")
    P.ins("s_lshl_b32 s40, s43, 8")
    ST.stamp(P)
    for c in range(5):
        for i in range(8):
            if i == 4: P.ins("s_add_u32 s41, s40, 20480")
            if 'x' not in PX:
                P.vm("buffer_load_dwordx4 v%d, s[20:23], %s offen lds" % (250 + (i & 3), "s40" if i < 4 else "s41"))
            if not (c == 4 and i == 7): P.ins("s_add_u32 m0, m0, 1024")
        if c < 4:
            P.ins("s_add_u32 s40, s40, 256")
            P.ins("s_cmp_ge_u32 s40, 1280")
            P.ins("s_cselect_b32 s41, 1280, 0")
            P.ins("s_sub_u32 s40, s40, s41")
    ST.stamp(P)
    P.ins("s_mov_b32 s46, s16")
    if 'w' not in PX: wtile(None)
    P.ins("s_add_u32 s46, s16, 3")
    P.ins("s_cmp_eq_u32 s16, 2")
    P.ins("s_cselect_b32 s46, 2, s46")
    if 'w' not in PX: wtile(None)
    ST.stamp(P)
    P.ins("v_and_b32 v249, 1, v0")
    P.ins("v_bfe_u32 v250, v0, 1, 1")
    P.ins("v_lshrrev_b32 v251, 2, v21")
    P.ins("v_and_b32 v252, 1, v20")
    P.ins("v_lshl_or_b32 v252, v252, 1, v249")
    P.ins("v_lshlrev_b32 v252, 4, v252")
    P.ins("v_lshl_add_u32 v252, v250, 3, v252")
    P.ins("v_lshrrev_b32 v253, 1, v20")
    P.ins("v_lshl_add_u32 v254, v253, 3, v251")
    P.ins("v_lshl_add_u32 v254, v254, 8, v252")
    P.ins("v_lshl_add_u32 v255, v253, 2, v251")
    P.ins("v_lshl_add_u32 v255, v255, 8, v252")
    for db in range(4):
        P.ins("v_xor_b32 v249, %d, v251" % db)
        P.ins("v_lshl_add_u32 v%d, v249, 6, v254" % (AV + db))
    P.ins("v_mov_b32 v16, v255")
    P.ins("v_mov_b32 v17, v251")
    for s in range(8):
        P.ins("v_add_u32 v249, %d, v19" % (2 * s))
        P.ins("v_xor_b32 v249, v249, v21")
        P.ins("v_lshlrev_b32 v249, 4, v249")
        P.ins("v_lshl_add_u32 v%d, v18, 8, v249" % (AK + s))
    P.ins("s_mov_b32 s44, 0x%x" % f32bits(SC))
    ST.stamp(P)
    for s in range(8): P.ins("v_add_u32 v%d, s47, v%d" % (AK + s, AK + s))
    for c in range(5):
        P.ins("s_waitcnt vmcnt(%d)" % (16 + 32 - 8 * c))
        for s in range(8):
            P.ds("ds_read_b128 %s, v%d offset:%d" % (vr(XF + 4 * (8 * c + s), 4), AK + s, c * 8192))
    P.wait_ds_all()
    for s in range(8): P.ins("v_subrev_u32 v%d, s47, v%d" % (AK + s, AK + s))
    ST.stamp(P)
    if B0E:
        P.ins("s_waitcnt vmcnt(0)")
        P.ins("s_barrier")
    P.ins("s_mul_i32 s46, s16, 5")
    P.ins("s_add_u32 s46, s46, 5")
    for n in range(5): wtile(None)
    if not B0E:
        P.ins("s_waitcnt vmcnt(40)")
        P.ins("s_barrier")
    ST.stamp(P)
    def wreads(t):
        its = []
        buf = t % 2
        if t in (8, 16):
            for db in range(4):
                its.append(Item("v_add_u32 v%d, 0x10000, v%d" % (AV + db, AV + db)))
        for ks2 in range(2):
            for db in range(4):
                for r2 in range(2):
                    its.append(Item("ds_read_b64_tr_b16 %s, v%d offset:%d" % (
                        ar(AF + 32 * buf + (ks2 * 4 + db) * 4 + 2 * r2, 2), AV + db,
                        (t % 8) * 8192 + ks2 * 4096 + r2 * 1024), 'ds', tag=('w', t, ks2, db)))
        return its
    def wmfma(t):
        its = []
        buf = t % 2
        for ks2 in range(2):
            for db in range(4):
                c = "0" if (t == 0 and ks2 == 0) else vr(QACC + 16 * db, 16)
                its.append(Item("v_mfma_f32_32x32x16_bf16 %s, %s, %s, %s" % (
                    vr(QACC + 16 * db, 16), ar(AF + 32 * buf + (ks2 * 4 + db) * 4, 4),
                    vr(XF + 4 * (2 * t + ks2), 4), c), need=[('w', t, ks2, db)]))
        return its
    def qbar():
        P.wait_vm_all()
        P.wait_ds_all()
        P.ins("s_barrier")
    emit(P, wreads(0), tags)
    for t in range(20):
        mf = wmfma(t)
        rd = wreads(t + 1) if t < 19 else []
        bnd = (t + 1) in (5, 20)
        g0 = 3 if bnd else 0
        seq = []
        per = (len(rd) + 3) // 4
        for n, m in enumerate(mf):
            seq.append(m)
            if bnd and n == g0 - 1: seq.append(qbar)
            if g0 <= n < g0 + 4: seq += rd[per * (n - g0):per * (n - g0 + 1)]
        emit(P, seq, tags)
    for db in range(4):
        P.ins("v_xor_b32 v249, %d, v17" % db)
        P.ins("v_lshl_add_u32 v%d, v249, 6, v16" % (AV + db))
        P.ins("v_add_u32 v%d, 0x%x, v%d" % (AV + db, 131072, AV + db))
    P.ins("v_mov_b32 v%d, 0xff800000" % VM)
    for s in range(8):
        for p in range(4):
            a = QACC + 16 * (s >> 1) + 8 * (s & 1) + 2 * p
            P.ins("v_cvt_pk_bf16_f32 v%d, v%d, v%d" % (QF + 4 * s + p, a, a + 1))
    ST.stamp(P)
    VMCE = 248; VLE = 250
    VMCL = 24; VLL = 26
    VM2 = 15; VC = 16
    AO2 = 192
    P.ins("s_mov_b32 s45, s44")
    P.ins("v_mov_b32 v%d, 0xff800000" % VM2)
    def kreads(kb):
        its = []
        for s in range(8):
            its.append(Item("ds_read_b128 %s, v%d offset:%d" % (ar(AF + 32 * (kb % 2) + 4 * s, 4), AK + s, (kb % 8) * 8192),
                            'ds', tag=('k', kb, s)))
        return its
    def smfma(kb):
        its = []
        for s in range(8):
            c = "0" if s == 0 else Sreg(kb)
            its.append(Item("v_mfma_f32_32x32x16_bf16 %s, %s, %s, %s" % (
                Sreg(kb), ar(AF + 32 * (kb % 2) + 4 * s, 4), vr(QF + 4 * s, 4), c), need=[('k', kb, s)]))
        return its
    def maxops(kb):
        its = []
        M = VM if kb < 8 else VM2
        for p in range(8):
            if kb < 12:
                a = SB + 16 * kb + 2 * p
                its.append(Item("v_max3_f32 v%d, v%d, v%d, v%d" % (M, a, a + 1, M)))
            else:
                a = AS + 16 * (kb - 12) + 2 * p
                t0 = 252 + 2 * (p % 2)
                its.append(Item("v_accvgpr_read_b32 v%d, a%d" % (t0, a)))
                its.append(Item("v_accvgpr_read_b32 v%d, a%d" % (t0 + 1, a + 1)))
                its.append(Item("v_max3_f32 v%d, v%d, v%d, v%d" % (M, t0, t0 + 1, M)))
        return its
    def xmax(M):
        return [Item("v_mov_b32 v%d, v%d" % (VT, M)), Item("v_mov_b32 v%d, v%d" % (VT + 1, M)),
                Item("v_permlane32_swap_b32 v%d, v%d" % (VT, VT + 1)),
                Item("v_max_f32 v%d, v%d, v%d" % (M, VT, VT + 1))]
    def barrier():
        P.wait_ds_all()
        P.ins("s_barrier")
    def Preg(kk):
        kb = kk >> 1; u = kk & 1
        if kb < 12: return SB + 16 * kb + 4 * u
        i2 = 2 * (kb - 12) + u
        return SB + 16 * i2 + 8
    def eops(kb):
        its = []
        MC, L = (VMCE, VLE) if kb < 8 else (VMCL, VLL)
        if kb < 12:
            regs = [SB + 16 * kb + r for r in range(16)]
        else:
            regs = [SB + 16 * (2 * (kb - 12) + (r >> 3)) + 8 + (r & 7) for r in range(16)]
        def dst(p):
            if kb < 12: return SB + 16 * kb + p
            return SB + 16 * (2 * (kb - 12) + (p >> 2)) + 8 + (p & 3)
        for p in range(11):
            if p < 8:
                a = regs[2 * p]
                if kb >= 12:
                    its.append(Item("v_accvgpr_read_b32 v%d, a%d" % (a, AS + 16 * (kb - 12) + 2 * p)))
                    its.append(Item("v_accvgpr_read_b32 v%d, a%d" % (a + 1, AS + 16 * (kb - 12) + 2 * p + 1)))
                if PKF & 1:
                    its.append(Item("v_pk_fma_f32 %s, %s, s[44:45], %s neg_lo:[0,0,1] neg_hi:[0,0,1]" % (vr(a, 2), vr(a, 2), vr(MC, 2))))
                else:
                    its.append(Item("v_fma_f32 v%d, v%d, s44, -v%d" % (a, a, MC)))
                    its.append(Item("v_fma_f32 v%d, v%d, s44, -v%d" % (a + 1, a + 1, MC)))
            if 0 <= p - 1 < 8:
                a = regs[2 * (p - 1)]
                its.append(Item("v_exp_f32 v%d, v%d" % (a, a)))
                its.append(Item("v_exp_f32 v%d, v%d" % (a + 1, a + 1)))
            if 0 <= p - 2 < 8:
                a = regs[2 * (p - 2)]
                if PKF & 2:
                    its.append(Item("v_pk_add_f32 %s, %s, %s" % (vr(L, 2), vr(L, 2), vr(a, 2))))
                else:
                    its.append(Item("v_add_f32 v%d, v%d, v%d" % (L, L, a)))
                    its.append(Item("v_add_f32 v%d, v%d, v%d" % (L + 1, L + 1, a + 1)))
            if 0 <= p - 3 < 8:
                q = p - 3
                its.append(Item("v_cvt_pk_bf16_f32 v%d, v%d, v%d" % (dst(q), regs[2 * q], regs[2 * q + 1])))
        return its
    barrier()
    emit(P, kreads(0), tags)
    for kb in range(16):
        mf = smfma(kb)
        seq = []
        nxt = kb + 1
        pre_items = []
        if nxt < 16:
            if nxt in (2, 6, 10, 14):
                pre_items.append(barrier)
            if nxt == 8:
                for s in range(8):
                    pre_items.append(Item("v_add_u32 v%d, 0x10000, v%d" % (AK + s, AK + s)))
            rd = kreads(nxt)
        else:
            rd = []
        fill = maxops(kb - 1) if kb >= 1 else []
        if kb == 8:
            fill += xmax(VM) + [Item("v_mul_f32 v%d, s44, v%d" % (VMCE, VM)), Item("v_mul_f32 v%d, s44, v%d" % (VMCE + 1, VM)),
                                Item("v_mov_b32 v%d, 0" % VLE), Item("v_mov_b32 v%d, 0" % (VLE + 1))]
        if kb >= 9: fill += eops(kb - 9)
        seq += pre_items
        for n, m in enumerate(mf):
            seq.append(m)
            if n < 4: seq += rd[2 * n:2 * n + 2]
            if n >= 2:
                k0 = (len(fill) * (n - 2)) // 6; k1 = (len(fill) * (n - 1)) // 6
                seq += fill[k0:k1]
        emit(P, seq, tags)
    e7 = eops(7)
    emit(P, e7[:12] + maxops(15) + e7[12:] + xmax(VM2), tags)
    P.ins("v_max_f32 v%d, v%d, v%d" % (VM2, VM, VM2))
    P.ins("v_mul_f32 v%d, s44, v%d" % (VMCL, VM2))
    P.ins("v_mul_f32 v%d, s44, v%d" % (VMCL + 1, VM2))
    P.ins("v_sub_f32 v%d, v%d, v%d" % (VC, VMCE, VMCL))
    P.ins("v_exp_f32 v%d, v%d" % (VC, VC))
    P.ins("v_mov_b32 v%d, 0" % VLL)
    P.ins("v_mov_b32 v%d, 0" % (VLL + 1))
    ST.stamp(P)
    def vbase(j): return (j - 2) * 16384 if j >= 2 else 131072 + j * 16384
    def vreads(kk):
        its = []
        for db in range(4):
            for r2 in range(2):
                its.append(Item("ds_read_b64_tr_b16 %s, v%d offset:%d" % (
                    ar(AF + 16 * (kk % 4) + 4 * db + 2 * r2, 2), AV + db, (kk & 3) * 4096 + r2 * 2048),
                    'ds', tag=('v', kk, db)))
        return its
    def pmfma(kk):
        its = []
        A = AO if kk < 16 else AO2
        for db in range(4):
            c = "0" if kk in (0, 16) else ar(A + 16 * db, 16)
            its.append(Item("v_mfma_f32_32x32x16_bf16 %s, %s, %s, %s" % (
                ar(A + 16 * db, 16), ar(AF + 16 * (kk % 4) + 4 * db, 4), vr(Preg(kk), 4), c), need=[('v', kk, db)]))
        return its
    def pbar(j):
        def f():
            if j not in (1, 3): P.ins("s_barrier")
            if j > 0:
                d = vbase(j) - vbase(j - 1)
                for db in range(4):
                    P.ins("v_add_u32 v%d, 0x%x, v%d" % (AV + db, d & 0xffffffff, AV + db))
        return f
    ework = []
    for kb in range(8, 16): ework += [(kb, it) for it in eops(kb)]
    emit(P, [pbar(0)] + vreads(0) + vreads(1), tags)
    epos = 0
    acc = 0.0
    blk_len = len(eops(8))
    OF = SB + 128
    def T(db, r): return SB + 16 * (2 * db + (r >> 3)) + (r & 7)
    class Rec:
        def __init__(self): self.its = []
        def ins(self, t): self.its.append(Item(t))
    R = Rec()
    R.ins("v_add_f32 v%d, v%d, v%d" % (VLE, VLE, VLE + 1))
    R.ins("v_add_f32 v%d, v%d, v%d" % (VLL, VLL, VLL + 1))
    R.ins("v_fma_f32 v%d, v%d, v%d, v%d" % (VLE, VLE, VC, VLL))
    R.ins("v_mov_b32 v%d, v%d" % (VT, VLE))
    R.ins("v_mov_b32 v%d, v%d" % (VT + 1, VLE))
    R.ins("v_permlane32_swap_b32 v%d, v%d" % (VT, VT + 1))
    R.ins("v_add_f32 v%d, v%d, v%d" % (VLE, VT, VT + 1))
    R.ins("v_rcp_f32 v%d, v%d" % (VLL, VLE))
    R.ins("v_mul_f32 v%d, v%d, v%d" % (VC, VC, VLL))
    R.ins("v_mov_b32 v%d, v%d" % (VLL + 1, VLL))
    R.ins("v_mov_b32 v%d, v%d" % (VLE, VC))
    R.ins("v_mov_b32 v%d, v%d" % (VLE + 1, VC))
    R.ins("s_lshl_b32 s40, s16, 13")
    R.ins("s_add_u32 s41, s40, 4096")
    R.ins("v_lshlrev_b32 v%d, 4, v0" % VO)
    for db in range(4):
        for r in range(16):
            R.ins("v_accvgpr_read_b32 v%d, a%d" % (T(db, r), AO + 16 * db + r))
        for p in range(8):
            R.ins("v_pk_mul_f32 %s, %s, %s" % (vr(T(db, 2 * p), 2), vr(T(db, 2 * p), 2), vr(VLE, 2)))
    R.ins("v_and_b32 v6, 1, v0")
    R.ins("v_bfe_u32 v7, v0, 1, 1")
    R.ins("v_bfe_u32 v8, v0, 2, 2")
    R.ins("v_bfe_u32 v5, v0, 4, 1")
    R.ins("v_lshl_or_b32 v5, v5, 1, v6")
    R.ins("v_lshlrev_b32 v5, 4, v5")
    R.ins("v_lshl_add_u32 v5, v7, 3, v5")
    R.ins("v_lshrrev_b32 v4, 5, v0")
    R.ins("v_lshl_add_u32 v4, v4, 3, v8")
    R.ins("v_mul_u32_u24 v4, 320, v4")
    R.ins("v_add_u32 v1, v4, v5")
    R.ins("v_add_u32 v2, 61440, v1")
    R.ins("v_add_u32 v3, 122880, v1")
    R.ins("v_add_u32 v4, s40, v%d" % VO)
    R.ins("s_and_b32 s42, s14, 28")
    R.ins("s_lshl_b32 s43, s15, 5")
    R.ins("s_add_u32 s42, s42, s43")
    R.ins("s_mul_i32 s42, s42, 24576")
    R.ins("s_add_u32 s4, s98, s42"); R.ins("s_addc_u32 s5, s99, 0")
    srd(R, 24, 4, 5, 98304)
    part_srd(R)
    isb = lambda it, n: n < 12 or it.t.startswith("v_pk_mul")
    early_b = [it for n, it in enumerate(R.its) if isb(it, n)]
    early_a = [it for n, it in enumerate(R.its) if not isb(it, n)]
    def late(db):
        its = []
        U = 216 + 16 * (db & 1)
        ob = OF + 8 * db
        for u in range(2):
            for r in range(8 * u, 8 * u + 8):
                its.append(Item("v_accvgpr_read_b32 v%d, a%d" % (U + r, AO2 + 16 * db + r)))
            for p in range(4 * u, 4 * u + 4):
                its.append(Item("v_pk_fma_f32 %s, %s, %s, %s" % (vr(T(db, 2 * p), 2), vr(U + 2 * p, 2), vr(VLL, 2), vr(T(db, 2 * p), 2))))
            for p in range(4 * u, 4 * u + 4):
                its.append(Item("v_cvt_pk_bf16_f32 v%d, v%d, v%d" % (ob + p, T(db, 2 * p), T(db, 2 * p) + 1)))
            sidx = 2 * db + u
            its.append(Item("buffer_store_dwordx4 %s, v%d, s[36:39], %s offen offset:%d sc1" % (
                vr(ob + 4 * u, 4), VO, "s40" if sidx < 4 else "s41", (sidx & 3) * 1024), 'vm'))
        return its
    ERATE = float(os.environ.get("ERATE", "0.46"))
    A0, A1 = 16, 22
    E0, E1 = 22, 26
    for kk in range(28):
        mf = pmfma(kk)
        fill = []
        acc += ERATE * blk_len
        tgt = int(acc)
        must = (kk + 1) >> 1
        while epos < len(ework) and (epos < tgt or ework[epos][0] <= must):
            fill.append(ework[epos][1]); epos += 1
        if A0 <= kk < A1:
            fill += early_a[(len(early_a) * (kk - A0)) // (A1 - A0):(len(early_a) * (kk - A0 + 1)) // (A1 - A0)]
        if E0 <= kk < E1:
            assert epos == len(ework)
            fill += early_b[(len(early_b) * (kk - E0)) // (E1 - E0):(len(early_b) * (kk - E0 + 1)) // (E1 - E0)]
        pre_items = []
        rd = []
        n2 = kk + 2
        if n2 < 32:
            if n2 % 4 == 0: pre_items.append(pbar(n2 // 4))
            rd = vreads(n2)
        seq = list(pre_items)
        fl = rd + fill
        seq += interleave(mf, fl)
        emit(P, seq, tags)
        if kk % 8 == 7: ST.stamp(P)
    r30 = vreads(30); r31 = vreads(31)
    seq = []
    for db in range(4): seq += r30[2 * db:2 * db + 2] + r31[2 * db:2 * db + 2]
    mfs = [pmfma(kk) for kk in range(28, 32)]
    for db in range(4):
        m4 = [mfs[k][db] for k in range(4)]
        fl = late(db - 1) if db > 0 else []
        seq += [m4[0]] + interleave(m4[1:], fl)
    seq += late(3)
    emit(P, seq, tags)
    ST.stamp(P)
    P.ins("s_barrier")
    ST.stamp(P)
    ACC = [24, 40, 152, 168, 216]; PK = 232
    KM = int(os.environ.get("KM", "16")); DD = int(os.environ.get("DD", "6")); RING = 12
    ops = [(n, cb) for n in range(KM) for cb in range(5)]
    groups = [(0, 1), (2, 3), (4,)]
    gend = {}
    for g in groups:
        ops += [(n, cb) for n in range(KM, 32) for cb in g]
        gend[len(ops) - 1] = g
    def bread(i):
        n, cb = ops[i]
        pos = (20 + n) & 31
        return [Item("ds_read_b64_tr_b16 %s, v%d offset:%d" % (
                    ar(AF + 4 * (i % RING) + 2 * r2, 2), 1 + pos // 12,
                    (pos % 12) * 5120 + r2 * 1280 + cb * 64), 'ds', tag=('b', i)) for r2 in range(2)]
    def bmfma(i):
        n, cb = ops[i]
        bf = vr(OF + 4 * n, 4) if n < 8 else vr(SB + 4 * (n - 8), 4)
        c = "0" if n == 0 else vr(ACC[cb], 16)
        return Item("v_mfma_f32_32x32x16_bf16 %s, %s, %s, %s" % (
                vr(ACC[cb], 16), ar(AF + 4 * (i % RING), 4), bf, c),
                need=[('b', i)], needvm=[('o', n)] if n >= 8 else ())
    oq = []
    for i in range(1, 4):
        sa, sb = ("s42", "s43") if i & 1 else ("s44", "s45")
        oq.append([Item("s_add_u32 %s, s14, %d" % (sa, i)), Item("s_and_b32 %s, %s, 3" % (sa, sa)),
                   Item("s_mul_i32 %s, %s, 24576" % (sa, sa)), Item("s_add_u32 %s, %s, 4096" % (sb, sa))])
        for s_ in range(8):
            n = 8 * i + s_
            it = Item("buffer_load_dwordx4 %s, v4, s[24:27], %s offen offset:%d" % (
                vr(SB + 4 * (n - 8), 4), sa if s_ < 4 else sb, (s_ & 3) * 1024), 'vm', tag=('o', n))
            if s_ == 0: oq[-1].append(it)
            else: oq.append([it])
    def pstores(cb):
        pk = PK + 8 * (cb & 1)
        its = []
        for u in range(2):
            for p in range(4):
                its.append(Item("v_cvt_pk_bf16_f32 v%d, v%d, v%d" % (pk + 4 * u + p, ACC[cb] + 8 * u + 2 * p, ACC[cb] + 8 * u + 2 * p + 1)))
            its.append(Item("buffer_store_dwordx4 %s, v%d, s[28:31], %s offen offset:%d sc1" % (
                vr(pk + 4 * u, 4), VO, ("s46", "s47", "s40")[cb >> 1], ((2 * cb + u) & 3) * 1024), 'vm'))
        return its
    P.ins("s_and_b32 s46, s2, 7")
    P.ins("s_mul_i32 s46, s46, 30720")
    P.ins("s_mul_i32 s47, s16, 10240")
    P.ins("s_add_u32 s46, s46, s47")
    P.ins("s_add_u32 s47, s46, 4096")
    P.ins("s_add_u32 s40, s46, 8192")
    NOWN = int(os.environ.get("NOWN", "24"))
    NPOST = int(os.environ.get("NPOST", "0"))
    fpost = min([k for k, (n, cb) in enumerate(ops) if n >= 32 - NPOST] + [9999])
    assert fpost > NOWN + DD + 2
    for i in range(DD): emit(P, bread(i), tags)
    rdn = DD
    pend = []; hold = 0
    for i in range(len(ops)):
        if i == min(NOWN, int(os.environ.get("NBS", "99"))):
            P.wait_vm_all()
            P.ins("s_barrier")
            ST.stamp(P)
        if i == NOWN:
            P.ins("s_barrier")
            ST.stamp(P)
            seq = []
            for _ in range(int(os.environ.get("OPRE", "6"))): seq += oq.pop(0)
            while rdn < i + DD: seq += bread(rdn); rdn += 1
            emit(P, seq, tags)
        seq = [bmfma(i)]
        if rdn < len(ops) and (rdn < 40 or i >= NOWN):
            if NPOST and rdn == fpost: seq += [Item("s_barrier")]
            seq += bread(rdn); rdn += 1
        if i >= NOWN and (i - NOWN) % int(os.environ.get("OEV", "3")) == 0:
            for _ in range(OIL):
                if oq: seq += oq.pop(0)
        if hold > 0: hold -= 1
        else:
            seq += pend[:3]; pend = pend[3:]
        if i in gend:
            for cb in gend[i]: pend += pstores(cb)
            hold = 1
        emit(P, seq, tags)
        if i in (39, 79, 111, 143): ST.stamp(P)
    emit(P, pend, tags)
    ST.stamp(P)
    P.wait_vm_all()
    ST.stamp(P)
    P.ins("s_barrier")
    P.ins("s_barrier")
    ST.stamp(P)
    P.ins("s_branch R_start")
    return P.text()

def part_srd(P):
    P.ins("s_and_b32 s42, s14, 3")
    P.ins("s_lshl_b32 s43, s15, 2")
    P.ins("s_add_u32 s42, s42, s43")
    P.ins("s_mul_i32 s42, s42, 245760")
    P.ins("s_add_u32 s42, s42, 0x2000000")
    P.ins("s_add_u32 s6, s98, s42"); P.ins("s_addc_u32 s7, s99, 0")
    srd(P, 28, 6, 7, 245760)

def gen_loader():
    P = Prog()
    P.label("A_loader")
    tags = {}
    ST = Stamper(); ST.stamp(P)
    P.ins("v_lshrrev_b32 v1, 4, v0")
    P.ins("v_and_b32 v2, 15, v0")
    P.ins("v_lshlrev_b32 v8, 4, v0")
    def vstage(bf, i):
        n = bf * 16 + i
        if n < 58: return vr(24 + 4 * n, 4)
        return ar(4 * (n - 58), 4)
    bufof = {}
    def toreg(n, bf):
        bufof[n] = bf
        sr = "s[24:27]" if n < 8 else "s[28:31]"
        for g in range(4):
            P.wait_vm(P.vm_issued - (LIM - 4))
            P.ins("s_mov_b32 s40, %d" % ((n % 8) * 16384 + g * 4096))
            for i in range(4):
                tags[n] = P.vm("buffer_load_dwordx4 %s, v8, %s, s40 offen offset:%d nt" % (vstage(bf, 4 * g + i), sr, i * 1024))
    for i in range(4):
        P.ins("v_add_u32 v3, %d, v1" % (4 * i))
        P.ins("v_xor_b32 v3, v3, v2")
        P.ins("v_lshlrev_b32 v3, 4, v3")
        P.ins("v_lshl_add_u32 v%d, v1, 8, v3" % (4 + i))
        P.ins("v_add_u32 v%d, 0x10000, v%d" % (12 + i, 4 + i))
    P.ins("v_lshlrev_b32 v3, 2, v1")
    P.ins("v_xor_b32 v3, v3, v2")
    P.ins("v_lshlrev_b32 v3, 4, v3")
    P.ins("v_lshl_add_u32 v9, v1, 8, v3")
    P.ins("v_add_u32 v10, 0x20000, v9")
    LST = int(os.environ.get("LST", "0"))
    def dump(n):
        if LST: ST.stamp(P)
        P.wait_vm(tags[n])
        if LST: ST.stamp(P)
        bf = bufof[n]
        for i in range(16):
            if n < 8:
                a = (4 if n < 4 else 12) + (i & 3)
                P.ds("ds_write_b128 v%d, %s offset:%d" % (a, vstage(bf, i), (n % 4) * 16384 + i * 1024))
            elif n < 10:
                P.ds("ds_write_b128 v10, %s offset:%d" % (vstage(bf, i), (n - 8) * 16384 + i * 1024))
            else:
                P.ds("ds_write_b128 v9, %s offset:%d" % (vstage(bf, i), (n - 10) * 16384 + i * 1024))
        P.wait_ds_all()
    def vdma(j):
        for g in range(4):
            P.wait_vm(P.vm_issued - (LIM2 - 4))
            P.ins("s_mov_b32 m0, %d" % ((j - 2) * 16384 + g * 4096))
            P.ins("s_mov_b32 s40, %d" % (j * 16384 + g * 4096))
            for i in range(4):
                tags[8 + j] = P.vm("buffer_load_dwordx4 v9, s[28:31], s40 offen offset:%d nt lds" % (i * 1024))
    def bar():
        P.ins("s_barrier")
        if not LST: ST.stamp(P)
    srd(P, 32, 96, 97, 256)
    P.ins("s_add_u32 s4, s98, 0x3000000"); P.ins("s_addc_u32 s5, s99, 0")
    srd(P, 20, 4, 5, 0x20000)
    P.ins("s_and_b32 s40, s2, 7")
    P.ins("s_and_b32 s41, s14, 3")
    P.ins("s_lshl_b32 s42, s15, 3")
    P.ins("s_add_u32 s42, s42, s40")
    P.ins("s_lshl_b32 s36, s42, 8")
    P.ins("s_lshl_b32 s42, s15, 2")
    P.ins("s_add_u32 s42, s42, s41")
    P.ins("s_lshl_b32 s42, s42, 8")
    P.ins("s_add_u32 s37, s42, 0x10000")
    P.ins("s_lshl_b32 s41, s41, 2")
    P.ins("s_add_u32 s38, s36, s41")
    P.ins("s_lshl_b32 s40, s40, 2")
    P.ins("s_add_u32 s39, s37, s40")
    if IPF == 1:
        P.ins("s_getpc_b64 s[4:5]")
        P.label("L_pc")
        P.ins("s_sub_u32 s4, s4, L_pc-%s" % KNAME)
        P.ins("s_subb_u32 s5, s5, 0")
        P.ins("s_lshr_b32 s6, s2, 3")
        P.ins("s_and_b32 s6, s6, 7")
        P.ins("s_cmp_ge_u32 s6, 6")
        P.ins("s_cselect_b32 s6, 0, s6")
        P.ins("s_lshl_b32 s6, s6, 13")
        P.ins("v_lshlrev_b32 v20, 7, v0")
        P.ins("v_add_u32 v20, s6, v20")
        P.ins("v_min_u32 v20, A_end-%s, v20" % KNAME)
        P.vm("global_load_dword v11, v20, s[4:5]")
    KVT = int(os.environ.get("KVT", "0"))
    if KVT:
        P.ins("v_lshlrev_b32 v20, %d, v0" % (12 if KVT == 1 else 16))
        P.ins("s_mov_b32 exec_lo, %d" % (-1 if KVT == 1 else 3))
        P.ins("s_mov_b32 exec_hi, 0")
        P.vm("buffer_load_dword v11, v20, s[24:27], 0 offen")
        P.vm("buffer_load_dword v11, v20, s[28:31], 0 offen")
        P.ins("s_mov_b64 exec, -1")
    P.ins("s_cmp_eq_u32 s2, 0")
    P.ins("s_cbranch_scc0 L_noclr")
    for r in range(4): P.ins("v_mov_b32 v%d, 0" % (16 + r))
    P.ins("v_lshlrev_b32 v20, 8, v0")
    P.ins("v_add_u32 v21, 0x10000, v20")
    P.ins("buffer_store_dwordx4 v[16:19], v20, s[20:23], 0 offen sc1")
    P.ins("buffer_store_dwordx4 v[16:19], v21, s[20:23], 0 offen sc1")
    P.ins("buffer_store_dwordx4 v[16:19], v21, s[20:23], 0 offen offset:16 sc1")
    P.ins("v_mov_b32 v17, 1")
    P.ins("s_waitcnt vmcnt(0)")
    P.ins("v_cmp_eq_u32 vcc, 0, v0")
    P.ins("s_and_saveexec_b64 s[18:19], vcc")
    P.ins("buffer_store_dword v17, v16, s[32:35], 0 offen sc1")
    P.ins("s_mov_b64 exec, s[18:19]")
    P.ins("s_waitcnt vmcnt(0)")
    P.label("L_noclr")
    if not LST: ST.stamp(P)
    global LIM
    sv = LIM; LIM = PLIM
    for n in range(PRE): toreg(n, n)
    LIM = sv
    bar()
    for n in range(PRE, PRE + 3): toreg(n, n)
    bar()
    for n in range(PRE + 3, 7): toreg(n, n)
    bar()
    dump(0); bar()
    dump(1); dump(2); bar()
    toreg(7, 0); dump(3); toreg(8, 1); dump(4); bar()
    toreg(9, 2); dump(5); toreg(10, 3); dump(6); bar()
    toreg(11, 4); dump(7); bar()
    toreg(12, 5); dump(8); toreg(13, 6); dump(9); bar()
    vdma(6); dump(10); vdma(7)
    for jj in range(5):
        P.ins("v_add_u32 v21, %d, v0" % (64 * jj))
        P.ins("v_mul_u32_u24 v22, 205, v21")
        P.ins("v_lshrrev_b32 v22, 12, v22")
        P.ins("v_mul_u32_u24 v23, 20, v22")
        P.ins("v_sub_u32 v21, v21, v23")
        P.ins("v_mul_u32_u24 v22, 1280, v22")
        P.ins("v_lshl_add_u32 v%d, v21, 4, v22" % (16 + jj))
    P.ins("s_and_b32 s45, s14, 3")
    P.ins("s_lshl_b32 s45, s45, 3")
    if TLBW:
        P.ins("v_mov_b32 v21, 0")
        P.ins("s_lshl_b32 s40, s15, 5")
        P.ins("s_add_u32 s40, s40, s14")
        P.ins("s_mul_i32 s40, s40, 24576")
        P.ins("s_and_b32 s42, s14, 3")
        P.ins("s_lshl_b32 s43, s15, 2")
        P.ins("s_add_u32 s42, s42, s43")
        P.ins("s_mul_i32 s42, s42, 245760")
        P.ins("s_and_b32 s43, s2, 7")
        P.ins("s_mul_i32 s43, s43, 30720")
        P.ins("s_add_u32 s42, s42, s43")
        P.ins("s_add_u32 s42, s42, 0x2000000")
        P.ins("s_mul_i32 s43, s15, 122880")
        srd(P, 8, 98, 99, 0x4000000)
        srd(P, 4, 100, 101, 983040)
        if TLBW == 1:
            P.ins("s_mov_b64 exec, 1")
            P.vm("buffer_load_dword v11, v21, s[8:11], s40 offen")
            P.vm("buffer_load_dword v11, v21, s[8:11], s42 offen sc1")
            P.vm("buffer_load_dword v11, v21, s[20:23], s36 offen sc1")
            P.vm("buffer_load_dword v11, v21, s[4:7], s43 offen")
            P.ins("s_mov_b64 exec, -1")
        else:
            P.ins("s_and_b32 s41, s2, 7")
            P.ins("s_mul_i32 s41, s41, 30720")
            P.ins("s_sub_u32 s42, s42, s41")
            P.ins("v_lshlrev_b32 v22, 12, v0")
            P.ins("s_mov_b64 exec, 0x3f")
            P.vm("buffer_load_dword v11, v22, s[8:11], s40 offen")
            P.ins("s_mov_b32 exec_lo, -1")
            P.ins("s_mov_b32 exec_hi, 0x0fffffff")
            P.vm("buffer_load_dword v11, v22, s[8:11], s42 offen sc1")
            P.ins("s_mov_b64 exec, 1")
            P.vm("buffer_load_dword v11, v21, s[20:23], s36 offen sc1")
            P.vm("buffer_load_dword v11, v21, s[20:23], s37 offen sc1")
            P.ins("s_mov_b64 exec, 0x3fffffff")
            P.vm("buffer_load_dword v11, v22, s[4:7], s43 offen")
            P.ins("s_mov_b64 exec, -1")
    if WTOUCH:
        P.ins("s_lshl_b32 s40, s15, 2")
        P.ins("s_and_b32 s41, s14, 3")
        P.ins("s_add_u32 s40, s40, s41")
        P.ins("s_mul_i32 s40, s40, 20480")
        P.ins("s_mul_i32 s41, s41, 320")
        P.ins("s_sub_u32 s40, s40, s41")
        P.ins("v_lshlrev_b32 v21, 7, v0")
        P.ins("v_add_u32 v22, 8192, v21")
        P.ins("v_and_b32 v23, 31, v0")
        P.ins("v_lshlrev_b32 v23, 7, v23")
        P.ins("v_add_u32 v23, 16384, v23")
        for n in range(3):
            P.vm("buffer_load_dword v11, v%d, s[48:51], s40 offen" % (21 + n))
    def wog(pos):
        P.wait_vm(P.vm_issued - 55)
        P.ins("s_add_u32 s40, s45, %d" % ((pos - 20) & 31))
        P.ins("s_and_b32 s40, s40, 31")
        P.ins("s_mul_i32 s40, s40, 20480")
        for jj in range(5):
            P.ins("s_mov_b32 m0, %d" % (pos * 5120 + jj * 1024))
            tags[('wo', pos)] = P.vm("buffer_load_dwordx4 v%d, s[48:51], s40 offen lds" % (16 + jj))
    P.ins("s_load_dword s47, s[96:97], 0")
    dump(11); bar()
    dump(12); bar()
    wog(20); wog(21)
    dump(13); bar()
    wog(22); wog(23); wog(24)
    P.wait_vm(tags[14]); bar()
    wog(25); wog(26); wog(27)
    P.wait_vm(tags[15]); bar()
    NW7 = int(os.environ.get("NW7", "8"))
    rest = [28, 29, 30, 31] + list(range(20))
    for pos in rest[:NW7]: wog(pos)
    part_srd(P)
    P.wait_vm(tags[('wo', 27)])
    bar()
    NPRE = int(os.environ.get("NPRE", "6"))
    for pos in rest[NW7:NW7 + NPRE]: wog(pos)
    SLP = int(os.environ.get("SLP", "4"))
    P.ins("s_cmp_ge_u32 s47, 1")
    P.ins("s_cbranch_scc1 C_done")
    P.ins("v_mov_b32 v2, 0")
    P.ins("s_mov_b32 s56, 0")
    P.label("C_poll")
    P.ins("buffer_load_dword v1, v2, s[32:35], 0 offen sc1")
    P.ins("s_waitcnt vmcnt(0)")
    P.ins("v_readfirstlane_b32 s57, v1")
    P.ins("s_add_u32 s56, s56, 1")
    P.ins("s_cmp_ge_u32 s56, 0x40000")
    P.ins("s_cbranch_scc1 C_done")
    P.ins("s_cmp_ge_u32 s57, 1")
    P.ins("s_cbranch_scc1 C_done")
    P.ins("s_sleep 16")
    P.ins("s_branch C_poll")
    P.label("C_done")
    def sync(slot, line, msk, nm, pr, mid=None):
        P.ins("v_mov_b32 v1, 1")
        P.ins("v_mov_b32 v3, 0")
        P.ins("v_and_b32 v2, %d, v0" % msk)
        P.ins("v_lshlrev_b32 v2, 2, v2")
        P.ins("v_cmp_eq_u32 vcc, 0, v0")
        bar()
        P.ins("s_and_saveexec_b64 s[18:19], vcc")
        P.vm("buffer_store_dword v1, v3, s[20:23], %s offen sc1" % slot)
        P.ins("s_mov_b64 exec, s[18:19]")
        if mid: mid()
        P.ins("s_mov_b32 s46, 0")
        NPL = int(os.environ.get("NPL", "4"))
        for k in range(NPL):
            P.ins("buffer_load_dword v%d, v2, s[20:23], %s offen sc1" % (pr + k, line))
            if k < NPL - 1: P.ins("s_sleep %d" % SLP)
        P.label(nm + "_poll")
        for k in range(NPL):
            P.ins("s_waitcnt vmcnt(%d)" % (NPL - 1))
            P.ins("v_cmp_ne_u32 vcc, 1, v%d" % (pr + k))
            P.ins("s_nop 1")
            P.ins("s_cmp_eq_u64 vcc, 0")
            P.ins("s_cbranch_scc1 %s_done" % nm)
            P.ins("buffer_load_dword v%d, v2, s[20:23], %s offen sc1" % (pr + k, line))
        P.ins("s_add_u32 s46, s46, 1")
        P.ins("s_cmp_lt_u32 s46, 0x10000")
        P.ins("s_cbranch_scc1 %s_poll" % nm)
        P.label(nm + "_done")
        if not LST: ST.stamp(P)
        if INV:
            P.ins("buffer_inv sc1")
            P.ins("s_waitcnt vmcnt(0)")
        bar()
        P.vm_done = P.vm_issued
    def mid():
        for pos in rest[NW7 + NPRE:24 - NPOST]: wog(pos)
        P.ins("s_waitcnt vmcnt(%s)" % os.environ.get("MW", "55"))
    NPOST = int(os.environ.get("NPOST", "0"))
    assert NW7 + NPRE <= 24 - NPOST
    sync("s38", "s36", 3, "S1", 100, mid)
    if NPOST:
        P.ins("s_sleep %s" % os.environ.get("PSL", "0"))
        for pos in rest[24 - NPOST:]: wog(pos)
        P.ins("s_waitcnt vmcnt(0)")
        P.vm_done = P.vm_issued
        P.ins("s_barrier")
    sync("s39", "s37", 7, "S2", 110)
    return P.text()

def gen_final():
    P = Prog()
    P.label("R_start")
    P.ins("s_and_b32 s40, s2, 7")
    P.ins("s_lshl_b32 s40, s40, 2")
    P.ins("s_add_u32 s40, s40, s16")
    P.ins("s_cmp_ge_u32 s40, 30")
    P.ins("s_cbranch_scc1 %s" % ("R_dump" if STAMP else "A_end"))
    ST = Stamper(); ST.n = 28
    P.ins("v_lshlrev_b32 v1, 4, v0")
    P.ins("s_lshl_b32 s41, s40, 10")
    tg = []
    for p in range(8):
        tg.append(P.vm("buffer_load_dwordx4 %s, v1, s[28:31], s41 offen sc1" % vr(32 + 4 * p, 4)))
        if p < 7: P.ins("s_add_u32 s41, s41, 30720")
    P.ins("s_mul_i32 s42, s15, 122880")
    P.ins("s_and_b32 s43, s14, 3")
    P.ins("s_mul_i32 s43, s43, 320")
    P.ins("s_add_u32 s42, s42, s43")
    P.ins("s_add_u32 s4, s100, s42"); P.ins("s_addc_u32 s5, s101, 0")
    P.ins("s_sub_u32 s42, 983040, s42")
    srd(P, 20, 4, 5, "s42")
    P.ins("s_mul_i32 s42, s40, 26")
    P.ins("s_lshr_b32 s42, s42, 8")
    P.ins("s_mul_i32 s43, s42, 10")
    P.ins("s_sub_u32 s43, s40, s43")
    P.ins("s_mul_i32 s42, s42, 40960")
    P.ins("s_lshl_b32 s43, s43, 5")
    P.ins("s_add_u32 s42, s42, s43")
    P.ins("v_and_b32 v2, 31, v0")
    P.ins("v_lshrrev_b32 v3, 5, v0")
    P.ins("v_mul_u32_u24 v2, 1280, v2")
    P.ins("v_lshl_add_u32 v2, v3, 4, v2")
    P.wait_vm(tg[0])
    for r in range(4):
        P.ins("v_lshlrev_b32 v%d, 16, v%d" % (24 + 2 * r, 32 + r))
        P.ins("v_and_b32 v%d, 0xffff0000, v%d" % (25 + 2 * r, 32 + r))
    for p in range(1, 8):
        P.wait_vm(tg[p])
        t = 64 + 8 * (p & 1)
        for r in range(4):
            P.ins("v_lshlrev_b32 v%d, 16, v%d" % (t + 2 * r, 32 + 4 * p + r))
            P.ins("v_and_b32 v%d, 0xffff0000, v%d" % (t + 1 + 2 * r, 32 + 4 * p + r))
        for r in range(4):
            P.ins("v_pk_add_f32 %s, %s, %s" % (vr(24 + 2 * r, 2), vr(24 + 2 * r, 2), vr(t + 2 * r, 2)))
    for p in range(4):
        P.ins("v_cvt_pk_bf16_f32 v%d, v%d, v%d" % (4 + p, 24 + 2 * p, 24 + 2 * p + 1))
    P.vm("buffer_store_dwordx4 v[4:7], v2, s[20:23], s42 offen")
    ST.n = 29
    if STAMP:
        P.wait_vm_all()
        ST.stamp(P)
        P.label("R_dump")
        ST.dump(P, 200, 0)
    return P.text()

def gen_oproj():
    P = Prog()
    tags = {}
    ST = Stamper()
    if FUSED:
        P.label("O_start")
        P.ins("s_load_dwordx4 s[4:7], s[0:1], 32")
        P.ins("s_load_dwordx4 s[8:11], s[0:1], 48")
        if STAMP: P.ins("s_memrealtime s[58:59]")
        P.ins("s_waitcnt vmcnt(0) lgkmcnt(0)")
        P.ins("s_barrier")
        srd(P, 12, 8, 9, 256)
        P.ins("s_mov_b32 s8, s10"); P.ins("s_mov_b32 s9, s11")
        P.ins("s_cmp_eq_u32 s16, 0")
        P.ins("s_cbranch_scc0 O_nosig")
        P.ins("s_lshr_b32 s17, s2, 5")
        P.ins("s_lshl_b32 s17, s17, 5")
        P.ins("v_mov_b32 v1, 1")
        P.ins("v_mov_b32 v2, s17")
        P.ins("v_cmp_eq_u32 vcc, 0, v0")
        P.ins("s_and_saveexec_b64 s[18:19], vcc")
        P.ins("buffer_atomic_add v1, v2, s[12:15], 0 offen sc1")
        P.ins("s_mov_b64 exec, s[18:19]")
        P.label("O_nosig")
        P.ins("s_cmp_ge_u32 s2, 240")
        P.ins("s_cbranch_scc1 O_end")
        P.ins("s_mov_b32 s50, s16")
        P.ins("s_mov_b32 s[52:53], s[12:13]".replace("s_mov_b32", "s_mov_b64"))
        P.ins("s_mov_b64 s[54:55], s[14:15]")
    else:
        P.raw(".globl oproj_kernel\n.p2align 8\n.type oproj_kernel,@function\noproj_kernel:")
        P.ins("s_cmp_ge_u32 s2, 240")
        P.ins("s_cbranch_scc1 O_end")
        P.ins("s_load_dwordx4 s[4:7], s[0:1], 32")
        P.ins("s_load_dwordx2 s[8:9], s[0:1], 56")
        if STAMP: P.ins("s_memrealtime s[58:59]")
    P.ins("s_and_b32 s14, s2, 7")
    P.ins("s_lshr_b32 s15, s2, 3")
    P.ins("s_mul_i32 s16, s15, 52")
    P.ins("s_lshr_b32 s16, s16, 8")
    P.ins("s_mul_i32 s17, s16, 5")
    P.ins("s_sub_u32 s17, s15, s17")
    P.ins("s_mul_i32 s48, s16, 3")
    P.ins("s_mul_i32 s49, s17, 5")
    P.ins("s_add_u32 s48, s48, s49")
    P.ins("s_lshr_b32 s18, s14, 1")
    P.ins("s_mul_i32 s18, s18, 192")
    P.ins("s_lshl_b32 s19, s16, 5")
    P.ins("s_add_u32 s18, s18, s19")
    P.ins("s_and_b32 s19, s14, 1")
    P.ins("s_mul_i32 s19, s19, 320")
    P.ins("s_lshl_b32 s17, s17, 6")
    P.ins("s_add_u32 s19, s19, s17")
    if FUSED:
        P.ins("s_mul_i32 s51, s18, 683")
        P.ins("s_lshr_b32 s51, s51, 16")
        P.ins("s_lshl_b32 s51, s51, 5")
        P.ins("s_mov_b32 s16, s50")
    else:
        P.ins("v_lshrrev_b32 v1, 6, v0")
        P.ins("v_and_b32 v0, 63, v0")
        P.ins("s_nop 0")
        P.ins("v_readfirstlane_b32 s16, v1")
    P.ins("s_lshl_b32 s40, s18, 13")
    P.ins("s_lshl_b32 s45, s16, 11")
    P.ins("s_add_u32 s40, s40, s45")
    P.ins("s_mul_i32 s41, s18, 1280")
    P.ins("s_lshl_b32 s42, s19, 1")
    P.ins("s_add_u32 s41, s41, s42")
    P.ins("s_mul_i32 s43, s16, %d" % (1024 * 1280))
    P.ins("s_add_u32 s43, s43, s42")
    P.ins("s_mul_i32 s46, s16, 40960")
    P.ins("v_and_b32 v18, 31, v0")
    P.ins("v_lshrrev_b32 v19, 5, v0")
    P.ins("v_lshrrev_b32 v20, 4, v0")
    P.ins("v_and_b32 v21, 15, v0")
    P.ins("v_lshrrev_b32 v3, 3, v0")
    P.ins("v_bfe_u32 v4, v0, 4, 1")
    P.ins("v_lshlrev_b32 v4, 2, v4")
    P.ins("v_and_b32 v5, 7, v0")
    P.ins("v_xor_b32 v4, v4, v5")
    P.ins("v_lshlrev_b32 v4, 4, v4")
    P.ins("v_mul_u32_u24 v6, 1280, v3")
    P.ins("v_add_u32 v24, v6, v4")
    for i in range(1, 4):
        P.ins("v_add_u32 v%d, %d, v24" % (24 + i, i * (10240 - 1024)))
    for j in range(4):
        P.ins("v_add_u32 v4, %d, v20" % (4 * (j & 1)))
        P.ins("v_xor_b32 v4, v4, v5")
        P.ins("v_lshlrev_b32 v4, 4, v4")
        P.ins("v_lshl_add_u32 v4, v3, 13, v4")
        P.ins("v_add_u32 v%d, %d, v4" % (28 + j, j * (65536 - 1024)))
    P.ins("s_waitcnt lgkmcnt(0)")
    stamp_setup(P, 8, 9, 1)
    ST.stamp(P)
    P.ins("s_add_u32 s4, s4, s43"); P.ins("s_addc_u32 s5, s5, 0")
    P.ins("s_sub_u32 s44, 5242880, s43")
    srd(P, 20, 4, 5, "s44")
    P.ins("s_add_u32 s8, s8, s40"); P.ins("s_addc_u32 s9, s9, 0")
    P.ins("s_sub_u32 s44, %d, s45" % (32 * 8192))
    srd(P, 28, 8, 9, "s44")
    NS = int(os.environ.get('NS', '3'))
    SL = 12288
    DPOS = int(os.environ.get('DPOS', '4'))
    def dma(t, part=3):
        sl = (t % NS) * SL
        P.ins("s_add_u32 s47, s48, %d" % t)
        P.ins("s_and_b32 s47, s47, 15")
        if part & 1:
            P.ins("s_mul_i32 s49, s47, 81920")
            for sub in range(2):
                P.ins("s_add_u32 m0, s46, %d" % (sl + 4096 * sub))
                if sub: P.ins("s_add_u32 s49, s49, 40960")
                for i in range(4):
                    tags[('T', t)] = P.vm("buffer_load_dwordx4 v%d, s[20:23], s49 offen offset:%d lds" % (24 + i, i * 1024))
        if part & 2:
            P.ins("s_lshl_b32 s47, s47, 7")
            P.ins("s_add_u32 m0, s46, %d" % (sl + 8192))
            for j in range(4):
                tags[('T', t)] = P.vm("buffer_load_dwordx4 v%d, s[28:31], s47 offen offset:%d lds" % (28 + j, j * 1024))
    ST.stamp(P)
    if FUSED:
        for t in range(NS): dma(t, 1)
        ST.stamp(P)
        P.ins("s_cmp_eq_u32 s16, 0")
        P.ins("s_cbranch_scc0 O_nopoll")
        P.ins("v_mov_b32 v2, s51")
        P.ins("s_mov_b32 s56, 0")
        P.label("O_poll")
        P.ins("buffer_load_dword v1, v2, s[52:55], 0 offen sc1")
        P.ins("s_waitcnt vmcnt(0)")
        P.ins("v_readfirstlane_b32 s57, v1")
        P.ins("s_add_u32 s56, s56, 1")
        P.ins("s_cmp_ge_u32 s56, 0x40000")
        P.ins("s_cbranch_scc1 O_pdone")
        P.ins("s_cmp_ge_u32 s57, 32")
        P.ins("s_cbranch_scc1 O_pdone")
        P.ins("s_sleep 4")
        P.ins("s_branch O_poll")
        P.label("O_pdone")
        P.ins("buffer_inv sc1")
        P.ins("s_waitcnt vmcnt(0)")
        P.label("O_nopoll")
        P.ins("s_barrier")
        ST.stamp(P)
        for t in range(NS): dma(t, 2)
    else:
        for t in range(NS): dma(t)
    P.ins("s_add_u32 s6, s6, s41"); P.ins("s_addc_u32 s7, s7, 0")
    P.ins("s_sub_u32 s44, 983040, s41")
    srd(P, 24, 6, 7, "s44")
    P.ins("v_and_b32 v6, 1, v0")
    P.ins("v_bfe_u32 v7, v0, 1, 1")
    P.ins("v_lshrrev_b32 v8, 2, v21")
    P.ins("v_and_b32 v9, 1, v20")
    P.ins("v_lshl_or_b32 v9, v9, 1, v6")
    P.ins("v_lshlrev_b32 v9, 4, v9")
    P.ins("v_lshl_add_u32 v9, v7, 3, v9")
    P.ins("v_lshrrev_b32 v10, 1, v20")
    P.ins("v_lshl_add_u32 v10, v10, 3, v8")
    P.ins("v_lshl_add_u32 v9, v10, 7, v9")
    P.ins("v_add_u32 v9, s46, v9")
    P.ins("v_bfe_u32 v10, v0, 3, 1")
    for nb in range(2):
        P.ins("v_xor_b32 v11, %d, v10" % nb)
        P.ins("v_lshl_add_u32 v%d, v11, 6, v9" % (12 + nb))
    P.ins("v_bfe_u32 v6, v0, 1, 3")
    P.ins("v_lshlrev_b32 v7, 7, v18")
    P.ins("v_add_u32 v7, s46, v7")
    for ks in range(4):
        P.ins("v_add_u32 v8, %d, v19" % (2 * ks))
        P.ins("v_xor_b32 v8, v8, v6")
        P.ins("v_lshl_add_u32 v%d, v8, 4, v7" % (14 + ks))
    ACC = 32
    FR = 64
    FB = 96
    ST.stamp(P)
    for t in range(16):
        sl = (t % NS) * SL
        P.wait_vm(tags[('T', t)])
        if t == 0: ST.stamp(P)
        seq = []
        for ks in range(4):
            seq.append(Item("ds_read_b128 %s, v%d offset:%d" % (vr(FB + 4 * ks, 4), 14 + ks, sl + 8192), 'ds'))
            for nb in range(2):
                for r2 in range(2):
                    seq.append(Item("ds_read_b64_tr_b16 %s, v%d offset:%d" % (
                        vr(FR + (ks * 2 + nb) * 4 + 2 * r2, 2), 12 + nb,
                        sl + (ks >> 1) * 4096 + (ks & 1) * 2048 + r2 * 512), 'ds', tag=('r', t, ks, nb)))
        n = 0
        for ks in range(4):
            for nb in range(2):
                c = "0" if (t == 0 and ks == 0) else vr(ACC + 16 * nb, 16)
                seq.append(Item("v_mfma_f32_32x32x16_bf16 %s, %s, %s, %s" % (
                    vr(ACC + 16 * nb, 16), vr(FR + (ks * 2 + nb) * 4, 4), vr(FB + 4 * ks, 4), c),
                    need=[('r', t, ks, nb)]))
                n += 1
                if n == DPOS and t + NS < 16:
                    def f(t=t):
                        P.wait_ds_all()
                        dma(t + NS)
                    seq.append(f)
        emit(P, seq, tags)
        if t % 2 == 1: ST.stamp(P)
    P.ins("v_lshlrev_b32 v4, 4, v0")
    P.ins("v_add_u32 v5, s46, v4")
    for j in range(8):
        P.ds("ds_write_b128 v5, %s offset:%d" % (vr(ACC + 4 * j, 4), j * 1024))
    P.wait_ds_all()
    P.ins("s_barrier")
    P.ins("s_lshl_b32 s47, s16, 11")
    P.ins("v_add_u32 v5, s47, v4")
    P.ins("v_add_u32 v6, 81920, v5")
    for w in range(4):
        for q in range(2):
            a = "v5" if w < 2 else "v6"
            P.ds("ds_read_b128 %s, %s offset:%d" % (vr(64 + 8 * w + 4 * q, 4), a, (w % 2) * 40960 + q * 1024))
    P.wait_ds_all()
    for r in range(8):
        P.ins("v_add_f32 v%d, v%d, v%d" % (64 + r, 64 + r, 72 + r))
        P.ins("v_add_f32 v%d, v%d, v%d" % (80 + r, 80 + r, 88 + r))
    for r in range(8):
        P.ins("v_add_f32 v%d, v%d, v%d" % (64 + r, 64 + r, 80 + r))
    for p in range(4):
        P.ins("v_cvt_pk_bf16_f32 v%d, v%d, v%d" % (96 + p, 64 + 2 * p, 64 + 2 * p + 1))
    P.ins("v_mul_u32_u24 v7, 1280, v18")
    P.ins("v_lshl_add_u32 v7, v19, 4, v7")
    P.ins("s_lshl_b32 s47, s16, 5")
    P.ins("v_add_u32 v7, s47, v7")
    P.vm("buffer_store_dwordx4 v[96:99], v7, s[24:27], 0 offen")
    ST.stamp(P)
    if STAMP: P.wait_vm_all()
    ST.stamp(P)
    ST.dump(P, 100, 1)
    P.label("O_end")
    P.ins("s_endpgm")
    return P.text()

HEAD = """; Kernarg layout for this problem (64 bytes, ptrs only, base s[0:1]):
;   0 x, 8 k_cache, 16 v_cache, 24 wq, 32 wo, 40 out, 48 debug, 56 ws
""" + ("""; @launch grid=(256,1,1) block=(256,1,1) lds=163840
""" if FUSED else """; @launch kernel=attn_kernel grid=(256,1,1) block=(256,1,1) lds=163840
; @launch kernel=oproj_kernel grid=(240,1,1) block=(256,1,1) lds=163840
""") + """.amdgcn_target "amdgcn-amd-amdhsa--gfx950"
.text
"""
def kd(name, vg, acc):
    return """.amdhsa_kernel %s
  .amdhsa_next_free_vgpr %d
  .amdhsa_next_free_sgpr 102
  .amdhsa_accum_offset %d
  .amdhsa_group_segment_fixed_size 0
  .amdhsa_kernarg_size 64
  .amdhsa_user_sgpr_count 2
  .amdhsa_user_sgpr_kernarg_segment_ptr 1
  .amdhsa_system_sgpr_workgroup_id_x 1
.end_amdhsa_kernel
""" % (name, vg, acc)

if __name__ == "__main__":
    a, n1 = pad_hazards(gen_attn())
    o, n2 = "", 0
    print("pads", n1, n2, file=sys.stderr)
    s = HEAD + a + "\n" + o + '\n.section .rodata,"a"\n.p2align 6\n' + kd(KNAME, 512, 256) + ("" if FUSED else ".p2align 6\n" + kd("oproj_kernel", 128, 128))
    open(sys.argv[1], "w").write(s)
```
